```python
import torch

def _softmax(x, axis=-1):
    return torch.softmax(x, dim=axis)
def _gelu(x):
    return torch.nn.functional.gelu(x, approximate="tanh")
def _silu(x):
    return torch.nn.functional.silu(x)
def _sigmoid(x):
    return torch.sigmoid(x)
def _layernorm(x, axis=-1, eps=1e-5):
    m = x.mean(dim=axis, keepdim=True)
    v = x.var(dim=axis, keepdim=True, unbiased=False)
    return (x - m) / torch.sqrt(v + eps)
def _scatter_add(tgt, idx, src, axis=0):
    return tgt.clone().index_add_(axis, idx, src)
def _segment_sum(src, seg, n):
    out = torch.zeros((n,) + src.shape[1:], dtype=src.dtype)
    return out.index_add_(0, seg, src)
def _pad(x, pw):
    flat = tuple(v for pair in reversed(pw) for v in pair)
    return torch.nn.functional.pad(x, flat)

kernel_name = 'standalone__gqa_block_cached__near_ridge'

def setup_inputs():

    _w = (lambda a: (lambda t: t.to(torch.bfloat16) if t.is_floating_point() else t)(torch.as_tensor(a)))
    B, Sq, D = 8, 240, 512
    Hq, Hkv, Sk, Dh = 32, 32, 512, 128
    assert Hq % Hkv == 0, (Hq, Hkv)
    return {
        "x": _w((lambda *s: torch.randn(*s, dtype=torch.bfloat16) * 0.8)(B, Sq, D)),
        "k_cache": _w((lambda *s: torch.randn(*s, dtype=torch.bfloat16) * 0.8)(B, Hkv, Sk, Dh)),
        "v_cache": _w((lambda *s: torch.randn(*s, dtype=torch.bfloat16) * 0.05)(B, Hkv, Sk, Dh)),
        "wq": _w((lambda *s: torch.randn(*s, dtype=torch.bfloat16) * 0.8)(D, Hq * Dh) * (D ** -0.5)),
        "wo": _w((lambda *s: torch.randn(*s, dtype=torch.bfloat16) * 0.05)(Hq * Dh, D) * ((Hq * Dh) ** -0.5)),
    }

def reference(x, k_cache, v_cache, wq, wo):
    B, Sq, D = x.shape
    Hq, Dh = 32, 128
    Hkv = k_cache.shape[1]
    rep = Hq // Hkv
    q = (lambda x, *d: x.permute(*d))((x @ wq).reshape(B, Sq, Hq, Dh), 0, 2, 1, 3)
    k = (lambda x, n, axis: torch.repeat_interleave(x, n, dim=axis))(k_cache, rep, axis=1)
    v = (lambda x, n, axis: torch.repeat_interleave(x, n, dim=axis))(v_cache, rep, axis=1)
    scores = torch.einsum("bhqd,bhkd->bhqk", q, k) * (Dh ** -0.5)
    p = _softmax(scores, axis=-1)
    o = torch.einsum("bhqk,bhkd->bhqd", p, v)
    return (lambda x, *d: x.permute(*d))(o, 0, 2, 1, 3).reshape(B, Sq, Hq * Dh) @ wo
```

```python
import re

REG = re.compile(r'^(-?)([vas])(\d+)$')
RNG = re.compile(r'^(-?)([vas])\[(\d+):(\d+)\]$')

def regs_of(op):
    op = op.strip()
    if op.startswith('abs(') or op.startswith('|'):
        op = op.strip('|').replace('abs(', '').rstrip(')')
    m = REG.match(op)
    if m: return [(m.group(2), int(m.group(3)))]
    m = RNG.match(op)
    if m: return [(m.group(2), i) for i in range(int(m.group(3)), int(m.group(4)) + 1)]
    if op == 'vcc': return [('x', 'vcc')]
    if op == 'exec': return [('x', 'exec')]
    if op == 'm0': return [('x', 'm0')]
    return []

TRANS = ('v_exp_f32', 'v_log_f32', 'v_rcp_f32', 'v_rsq_f32', 'v_sqrt_f32')

class Ins:
    __slots__ = ('text', 'mn', 'rd', 'wr', 'kind', 'tag', 'ops', 'srcc')
    def __init__(self, text, tag=None):
        self.text = text
        self.tag = tag
        t = text.split(';')[0].strip()
        self.srcc = []
        if t.endswith(':') or t.startswith('.') or not t:
            self.mn = ''; self.rd = []; self.wr = []; self.kind = 'label'; self.ops = []
            return
        parts = t.split(None, 1)
        mn = parts[0]; self.mn = mn
        ops = []
        if len(parts) > 1:
            ops = [o.strip() for o in parts[1].split(',')]
            last = ops[-1].split()
            ops = ops[:-1] + [last[0]] + last[1:]
        self.ops = ops
        R = lambda l: [r for o in l for r in regs_of(o)]
        if mn.startswith('v_mfma'):
            self.kind = 'mfma'; self.wr = R(ops[:1]); self.rd = R(ops[1:4]); self.srcc = R(ops[3:4])
        elif mn.startswith('ds_read'):
            self.kind = 'dsr'; self.wr = R(ops[:1]); self.rd = R(ops[1:2])
        elif mn.startswith('ds_write'):
            self.kind = 'dsw'; self.wr = []; self.rd = R(ops[:2])
        elif mn.startswith('buffer_load') or mn.startswith('global_load'):
            if 'lds' in ops:
                self.kind = 'dma'; self.wr = []; self.rd = R(ops[:3]) + [('x', 'm0')]
            else:
                self.kind = 'vld'; self.wr = R(ops[:1]); self.rd = R(ops[1:4])
        elif mn.startswith('buffer_store') or mn.startswith('global_store'):
            self.kind = 'vst'; self.wr = []; self.rd = R(ops[:4])
        elif mn.startswith('buffer_atomic') or mn.startswith('global_atomic'):
            self.kind = 'vst'; self.wr = []; self.rd = R(ops[:4])
        elif mn.startswith('buffer_') :
            self.kind = 'vst'; self.wr = []; self.rd = []
        elif mn.startswith('v_permlane'):
            self.kind = 'valu'; self.wr = R(ops[:2]); self.rd = R(ops[:2])
        elif mn.startswith('v_'):
            self.kind = 'valu'; self.wr = R(ops[:1]); self.rd = R(ops[1:])
            if mn.startswith('v_fmac'): self.rd += self.wr
            if mn.startswith('v_cndmask') and len(ops) == 3: self.rd.append(('x', 'vcc'))
        elif mn.startswith('s_load') or mn.startswith('s_memtime') or mn.startswith('s_memrealtime'):
            self.kind = 'smem'; self.wr = R(ops[:1]); self.rd = R(ops[1:2])
        elif mn in ('s_waitcnt', 's_barrier', 's_nop', 's_endpgm', 's_branch', 's_sleep', 's_setprio') or mn.startswith('s_cbranch'):
            self.kind = mn; self.wr = []; self.rd = []
        elif mn.startswith('s_cmp'):
            self.kind = 'salu'; self.wr = []; self.rd = R(ops)
        elif mn.startswith('s_'):
            self.kind = 'salu'; self.wr = R(ops[:1]); self.rd = R(ops[1:])
            if 'saveexec' in mn: self.wr.append(('x', 'exec'))
        else:
            raise ValueError('unknown instruction ' + text)

def mfma_passes(mn):
    if '32x32x16' in mn: return 8
    if '16x16x32' in mn: return 4
    raise ValueError(mn)

def check(trace, name=''):
    errs = []
    pos = 0
    last_valu_w = {}
    last_trans_w = {}
    last_mfma_w = {}
    last_mfma_c = {}
    last_valu_sw = {}
    last_m0 = -100
    last_st = {}
    vm = []
    lg = []
    pend = {}
    smem_pend = set()
    landed = {}
    inflight_tags = {}
    region_reads = {}
    def err(i, msg):
        errs.append(f'[{name}] #{i} {trace[i].text.strip()} :: {msg}')
    for i, ins in enumerate(trace):
        k = ins.kind
        if k == 'label': continue
        for r in ins.rd + ins.wr:
            if r in pend: err(i, f'touches {r} still being loaded by "{pend[r].text.strip()}"')
            if r in smem_pend: err(i, f'touches {r} pending smem')
        if k == 'mfma':
            for r in ins.rd:
                if r in last_valu_w and pos - last_valu_w[r] - 1 < 2: err(i, f'valu->mfma {r} dist {pos-last_valu_w[r]-1}')
            cset = tuple(ins.srcc)
            for r in ins.rd:
                if r in last_mfma_w:
                    p, ps, dst = last_mfma_w[r]
                    d = pos - p - 1
                    if r in ins.srcc and r not in regs_of(ins.ops[1]) + regs_of(ins.ops[2]):
                        if cset == dst and ps == mfma_passes(ins.mn): need = 0
                        else: need = {4: 6, 8: 10}[ps]
                    else:
                        need = {4: 8, 8: 12}[ps]
                    if d < need: err(i, f'mfma->mfma {r} dist {d} need {need}')
            for r in ins.wr:
                if r in last_mfma_w and r not in ins.srcc:
                    p, ps, dst = last_mfma_w[r]
                    d = pos - p - 1
                    need = {4: 6, 8: 10}[ps]
                    if d < need: err(i, f'mfma WAW {r} dist {d} need {need}')
        if k in ('valu', 'dsw', 'vst', 'dsr', 'vld', 'dma'):
            for r in ins.rd + ins.wr:
                if r in last_mfma_w:
                    p, ps, dst = last_mfma_w[r]
                    d = pos - p - 1
                    need = {4: 8, 8: 12}[ps]
                    if d < need: err(i, f'mfma->use {r} dist {d} need {need}')
        if k == 'valu':
            for r in ins.wr:
                if r in last_mfma_c:
                    p, ps = last_mfma_c[r]
                    d = pos - p - 1
                    need = {4: 3, 8: 7}[ps]
                    if d < need: err(i, f'mfma srcC WAR {r} dist {d} need {need}')
                if r in last_st and pos - last_st[r] - 1 < 2: err(i, f'store-data WAR {r}')
            if ins.mn.split('_e')[0] not in TRANS:
                for r in ins.rd:
                    if r in last_trans_w and pos - last_trans_w[r] - 1 < 1: err(i, f'trans->valu {r}')
            for r in ins.rd:
                if r in last_valu_sw and pos - last_valu_sw[r] - 1 < 2: err(i, f'valu sgpr->valu {r}')
            if ins.mn.startswith('v_permlane'):
                for r in ins.rd:
                    if r in last_valu_w and pos - last_valu_w[r] - 1 < 2: err(i, f'valu->permlane {r}')
            if ins.mn.startswith('v_readfirstlane') or ins.mn.startswith('v_readlane'):
                for r in ins.rd:
                    if r in last_valu_w and pos - last_valu_w[r] - 1 < 1: err(i, f'valu->readlane {r}')
        if k in ('vld', 'vst', 'dma'):
            for r in ins.rd:
                if r in last_valu_sw and pos - last_valu_sw[r] - 1 < 5: err(i, f'valu sgpr->vmem {r}')
        if k == 'dma' and pos - last_m0 - 1 < 1: err(i, 'm0->dma')
        if k == 'dsr' and ins.tag is not None:
            region, content, priv = ins.tag
            st = landed.get((region, content))
            need = 'own' if priv else 'all'
            if not (st == 'all' or (priv and st == 'own')) or inflight_tags.get((region, content), 0):
                err(i, f'LDS read of {ins.tag} not visible (state {st})')
            region_reads[region] = 'pending'
        if k == 'dma' and ins.tag is not None:
            region, content, priv = ins.tag
            st = region_reads.get(region, 'free')
            if not (st == 'free' or (priv and st == 'done')):
                err(i, f'DMA into {ins.tag} while region reads are {st}')
            for key in [key for key in landed if key[0] == region and key[1] != content]:
                del landed[key]
            inflight_tags[(region, content)] = inflight_tags.get((region, content), 0) + 1
            landed.pop((region, content), None)
        if k == 'valu':
            for r in ins.wr:
                if r[0] in 'va':
                    last_valu_w[r] = pos
                    last_trans_w.pop(r, None)
                    if ins.mn.split('_e')[0] in TRANS: last_trans_w[r] = pos
                    last_mfma_w.pop(r, None)
                else:
                    last_valu_sw[r] = pos
        if k == 'mfma':
            ps = mfma_passes(ins.mn)
            for r in ins.wr: last_mfma_w[r] = (pos, ps, tuple(ins.wr)); last_valu_w.pop(r, None)
            for r in ins.srcc: last_mfma_c[r] = (pos, ps)
        if k == 'salu':
            for r in ins.wr:
                if r == ('x', 'm0'): last_m0 = pos
                last_valu_sw.pop(r, None)
        if k in ('vld', 'vst', 'dma'):
            vm.append(ins)
            if len(vm) > 63: err(i, 'vmcnt overflow')
            for r in ins.wr: pend[r] = ins; last_mfma_w.pop(r, None)
            if k == 'vst' and ('x4' in ins.mn or 'x3' in ins.mn):
                for r in regs_of(ins.ops[0]): last_st[r] = pos
        if k in ('dsr', 'dsw'):
            lg.append(ins)
            for r in ins.wr: pend[r] = ins; last_mfma_w.pop(r, None)
        if k == 'smem':
            for r in ins.wr: smem_pend.add(r)
        if k == 's_waitcnt':
            m = re.search(r'vmcnt\((\d+)\)', ins.text)
            if m:
                n = int(m.group(1))
                while len(vm) > n:
                    o = vm.pop(0)
                    for r in o.wr:
                        if pend.get(r) is o: del pend[r]
                    if o.kind == 'dma' and o.tag is not None:
                        key = (o.tag[0], o.tag[1])
                        inflight_tags[key] -= 1
                        if inflight_tags[key] == 0: landed[key] = 'own'
            m = re.search(r'lgkmcnt\((\d+)\)', ins.text)
            if m:
                n = int(m.group(1))
                if smem_pend and n == 0: smem_pend.clear()
                while len(lg) > n:
                    o = lg.pop(0)
                    for r in o.wr:
                        if pend.get(r) is o: del pend[r]
                for region in list(region_reads):
                    if region_reads[region] == 'pending' and not any(o.kind == 'dsr' and o.tag is not None and o.tag[0] == region for o in lg):
                        region_reads[region] = 'done'
        if k == 's_barrier':
            for key in landed: landed[key] = 'all'
            for region in region_reads:
                if region_reads[region] == 'done': region_reads[region] = 'free'
        if k == 's_nop':
            pos += int(ins.ops[0]) + 1
        else:
            pos += 1
    return errs

class Prog:
    def __init__(self):
        self.code = []
        self.trace = []
    def seg(self, lines, code=True):
        out = [l if isinstance(l, Ins) else Ins(l) for l in lines]
        if code: self.code += out
        self.trace += out
    def loop(self, bodies):
        b0 = [l if isinstance(l, Ins) else Ins(l) for l in bodies[0]]
        self.code += b0
        for b in bodies:
            bb = [l if isinstance(l, Ins) else Ins(l) for l in b]
            assert [x.text for x in bb] == [x.text for x in b0], 'loop bodies differ'
            self.trace += bb
    def text(self):
        out = []
        for i in self.code:
            out.append(i.text if i.kind == 'label' else '    ' + i.text)
        return '\n'.join(out) + '\n'

def weave(mfmas, gaps):
    out = []
    for m, g in zip(mfmas, gaps):
        out.append(m); out += g
    return out
```

```python
import struct, math, sys
from asmlib import *

def f2u(x): return struct.unpack('<I', struct.pack('<f', x))[0]
CSCALE = f2u(math.log2(math.e) / math.sqrt(128.0))
MF = 'v_mfma_f32_32x32x16_bf16'

def vr(b, n=1): return f'v{b}' if n == 1 else f'v[{b}:{b+n-1}]'
def ar(b, n=1): return f'a{b}' if n == 1 else f'a[{b}:{b+n-1}]'
def sr(b, n=1): return f's{b}' if n == 1 else f's[{b}:{b+n-1}]'

S_X, S_WQ, S_K, S_V, S_O = 20, 24, 28, 32, 36
S_B, S_H, S_W = 40, 41, 42
S_KC, S_XOFF, S_WOFF, S_M0X, S_DELTA, S_CNT, S_T0, S_T1 = 43, 44, 45, 46, 47, 48, 49, 50
S_KOFF, S_VOFF, S_M0K, S_POS, S_C = 51, 52, 53, 54, 56
S_W4K = 58
S_ST = 60
S_STAMP = 64
V_KA, V_VA, V_VK, V_VV, V_L = 8, 16, 20, 24, 26
V_T = 1
V_SB = [32, 64]
V_VX, V_VW, V_XA, V_WA = 32, 40, 44, 48
V_NEGM = 96
V_O = 128
A_Q, A_KF, A_VF, A_F = 0, 64, 96, [128, 152]
R = 5
SLOT = [16384, 65536, 114688]

def O_(qt, T): return V_O + (qt * 4 + T) * 16
def Q_(qt, t): return A_Q + (qt * 8 + t) * 4

class Stamps:
    def __init__(self, on): self.on = on; self.n = 0
    def __call__(self):
        if not self.on: return []
        r = S_STAMP + 2 * self.n; self.n += 1
        return [f's_memtime {sr(r, 2)}']

def srd(d, lo, hi, size):
    return [f's_mov_b32 s{d}, s{lo}', f's_mov_b32 s{d+1}, s{hi}', f's_mov_b32 s{d+2}, {size}', f's_mov_b32 s{d+3}, 0x00020000']

def dma(voff, srdreg, soff, imm, nt, tag):
    return Ins(f'buffer_load_dwordx4 v{voff}, {sr(srdreg, 4)}, s{soff} offen offset:{imm}{" nt" if nt else ""} lds', tag)

def spread(n, items, start=0, end=None):
    end = n if end is None else end
    g = [[] for _ in range(n)]
    for i, it in enumerate(items):
        g[start + i * (end - start) // len(items)] += it
    return g

def merge(*gs):
    return [sum((g[i] for g in gs), []) for i in range(len(gs[0]))]

COST = {'v_exp_f32': 8}
def cost(ins):
    t = ins.text if isinstance(ins, Ins) else ins
    mn = t.split()[0]
    if mn == 'v_exp_f32': return 8
    if mn.startswith('buffer_load'): return 24
    return 4

def fill(gaps, seq, start, end):
    base = [sum(cost(x) for x in g) for g in gaps]
    tot = sum(base[start:end]) + sum(cost(x) for x in seq)
    n = end - start
    k = 0; acc = 0
    for gi in range(start, end):
        acc += base[gi]
        target = tot * (gi - start + 1) / n
        while k < len(seq) and (acc + cost(seq[k]) / 2 <= target or gi == end - 1):
            gaps[gi].append(seq[k]); acc += cost(seq[k]); k += 1
    return gaps

def q_reads(s, k, F):
    slot = (s + 1) % 3
    out = []
    for T in range(4):
        for u in range(2):
            out.append(Ins(f'ds_read_b64_tr_b16 {ar(F + T*4 + u*2, 2)}, v{V_WA+T} offset:{4096*k + 1024*u}', (f'qs{slot}', f'st{s}', False)))
    for qt in range(2):
        out.append(Ins(f'ds_read_b128 {ar(F + 16 + qt*4, 4)}, v{V_XA+k} offset:{4096*qt}', (f'qs{slot}', f'st{s}', False)))
    return out

def q_mfmas(F):
    return [f'{MF} {vr(O_(qt, T), 16)}, {ar(F + T*4, 4)}, {ar(F + 16 + qt*4, 4)}, {vr(O_(qt, T), 16)}' for T in range(4) for qt in range(2)]

def q_dma_groups(s):
    slot = (s + 1) % 3
    tag = (f'qs{slot}', f'st{s}', False)
    ga = [[f's_mov_b32 m0, s{S_M0X}', 's_nop 0', dma(V_VX + 0, S_X, S_XOFF, 0, False, tag)]] + [[dma(V_VX + i, S_X, S_XOFF, 1024*i, False, tag)] for i in range(1, 4)]
    gb = [[f's_add_u32 m0, s{S_M0X}, 4096', 's_nop 0', dma(V_VX + 4, S_X, S_XOFF, 0, False, tag)]] + [[dma(V_VX + 4 + i, S_X, S_XOFF, 1024*i, False, tag)] for i in range(1, 4)]
    gc = [[f's_sub_u32 s{S_T0}, s{S_M0X}, s{S_W4K}', f's_add_u32 m0, s{S_T0}, 32768', 's_nop 0', dma(V_VW + 0, S_WQ, S_WOFF, 0, False, tag)]] + [[dma(V_VW + i, S_WQ, S_WOFF, 1024*i, False, tag)] for i in range(1, 4)]
    return ga, gb, gc

def q_dma_advance():
    return [f's_add_u32 s{S_KC}, s{S_KC}, 1', f's_and_b32 s{S_KC}, s{S_KC}, 7',
            f's_lshl_b32 s{S_XOFF}, s{S_KC}, 7', f's_lshl_b32 s{S_WOFF}, s{S_KC}, 19',
            f's_add_u32 s{S_M0X}, s{S_M0X}, 49152', f's_cmp_ge_u32 s{S_M0X}, 163840',
            f's_cselect_b32 s{S_T0}, 147456, 0', f's_sub_u32 s{S_M0X}, s{S_M0X}, s{S_T0}']

def kv_regions(kind, u):
    return f'{kind}{u % R}'

def kv_dma_fixed(kind, u, alias=None):
    pos = (u % R) * 32768 + (16384 if kind == 'V' else 0)
    tag = (alias or kv_regions(kind, u), f'{kind}{u}', False)
    if kind == 'K':
        pre = [f's_add_u32 s{S_T1}, s{S_W4K}, {u*16384}', f's_add_u32 m0, s{S_W4K}, {pos}', 's_nop 0']
        return [pre + [dma(V_VK, S_K, S_T1, 0, True, tag)]] + [[dma(V_VK + i, S_K, S_T1, 1024*i, True, tag)] for i in range(1, 4)]
    if u == 0:
        pre = [f's_and_b32 s{S_T1}, s{S_W4K}, 4096', f's_add_u32 m0, s{S_W4K}, {pos}', 's_nop 0']
    else:
        pre = [f's_add_u32 s{S_T1}, s{S_W4K}, {u*16384 - 8192}', f's_add_u32 m0, s{S_W4K}, {pos}', 's_nop 0']
    return [pre + [dma(V_VV, S_V, S_T1, 0, True, tag)]] + [[dma(V_VV, S_V, S_T1, 1024*i, True, tag)] for i in range(1, 4)]

def q_group(F, reads, dmag):
    g = spread(8, [[r] for r in reads], 0, 5)
    if dmag: g = merge(g, spread(8, dmag, 4, 8))
    return ['s_waitcnt lgkmcnt(0)'] + weave(q_mfmas(F), g)

def q_addr_advance():
    out = [f's_add_u32 s{S_POS}, s{S_POS}, 49152', f's_cmp_ge_u32 s{S_POS}, 163840',
           f's_cselect_b32 s{S_T0}, 147456, 0', f's_sub_u32 s{S_DELTA}, 49152, s{S_T0}', f's_sub_u32 s{S_POS}, s{S_POS}, s{S_T0}']
    out += [f'v_add_u32 v{V_XA+i}, s{S_DELTA}, v{V_XA+i}' for i in range(4)]
    out += [f'v_add_u32 v{V_WA+i}, s{S_DELTA}, v{V_WA+i}' for i in range(4)]
    return out

def k_reads(u, half, dst=A_KF, region=None):
    return [Ins(f'ds_read_b128 {ar(dst + 4*t, 4)}, v{V_KA+t} offset:{8192*half}', (region or kv_regions('K', u), f'K{u}', False)) for t in range(8)]

def v_reads(u, half, dst=A_VF, region=None):
    out = []
    for tp in range(2):
        for T in range(4):
            for uu in range(2):
                out.append(Ins(f'ds_read_b64_tr_b16 {ar(dst + (tp*4+T)*4 + uu*2, 2)}, v{V_VA+T} offset:{8192*half + 4096*tp + 2048*uu}', (region or kv_regions('V', u), f'V{u}', False)))
    return out

def qk_mfmas(sb, first_c):
    out = []
    for t in range(8):
        for qt in range(2):
            d = vr(sb + 16*qt, 16)
            c = d if t else first_c(qt)
            out.append(f'{MF} {d}, {ar(A_KF + 4*t, 4)}, {ar(Q_(qt, t), 4)}, {c}')
    return out

def pv_mfmas(sb, vf=A_VF, by_qt=False):
    order = [(tp, T, qt) for tp in range(2) for T in range(4) for qt in range(2)]
    if by_qt: order = [(tp, T, qt) for qt in range(2) for tp in range(2) for T in range(4)]
    return [f'{MF} {vr(O_(qt, T), 16)}, {ar(vf + (tp*4+T)*4, 4)}, {vr(sb + 16*qt + 8*tp, 4)}, {vr(O_(qt, T), 16)}' for tp, T, qt in order]

def sm_seq(sb):
    regs = [(qt, sb + 16*qt + 8*tp + i, sb + 16*qt + 8*tp) for tp in range(2) for qt in range(2) for i in range(8)]
    out = []
    def post(k):
        qt, r, base = regs[k]
        o = [f'v_add_f32 v{V_L+qt}, v{V_L+qt}, v{r}']
        if (r - base) & 1:
            o.append(f'v_cvt_pk_bf16_f32 v{base + (r - base)//2}, v{r-1}, v{r}')
        return o
    for k in range(32):
        out.append(f'v_exp_f32 v{regs[k][1]}, v{regs[k][1]}')
        if k: out += post(k - 1)
    out += ['s_nop 0'] + post(31)
    return out

def kv_addr_advance():
    out = [f's_add_u32 s{S_POS}, s{S_POS}, 32768', f's_cmp_ge_u32 s{S_POS}, {R*32768}',
           f's_cselect_b32 s{S_T0}, {R*32768}, 0', f's_sub_u32 s{S_DELTA}, 32768, s{S_T0}', f's_sub_u32 s{S_POS}, s{S_POS}, s{S_T0}']
    out += [f'v_add_u32 v{V_KA+i}, s{S_DELTA}, v{V_KA+i}' for i in range(8)]
    out += [f'v_add_u32 v{V_VA+i}, s{S_DELTA}, v{V_VA+i}' for i in range(4)]
    return out

def negm_c(qt): return vr(V_NEGM + 16*qt, 16)

def attn_iter(it):
    u = it + 1
    ktag = (kv_regions('K', it + R), f'K{it+R}', False)
    vtag = (kv_regions('V', it + R), f'V{it+R}', False)
    kd = [[f's_mov_b32 m0, s{S_M0K}', 's_nop 0', dma(V_VK, S_K, S_KOFF, 0, True, ktag)]] + [[dma(V_VK + i, S_K, S_KOFF, 1024*i, True, ktag)] for i in range(1, 4)]
    vd = [[f's_add_u32 m0, s{S_M0K}, 16384', 's_nop 0', dma(V_VV, S_V, S_VOFF, 0, True, vtag)]] + [[dma(V_VV, S_V, S_VOFF, 1024*i, True, vtag)] for i in range(1, 4)]
    adv = [f's_add_u32 s{S_KOFF}, s{S_KOFF}, 16384', f's_add_u32 s{S_VOFF}, s{S_VOFF}, 16384',
           f's_add_u32 s{S_M0K}, s{S_M0K}, 32768', f's_cmp_ge_u32 s{S_M0K}, {R*32768}',
           f's_cselect_b32 s{S_T0}, {R*32768}, 0', f's_sub_u32 s{S_M0K}, s{S_M0K}, s{S_T0}']
    out = []
    for half in range(2):
        psb = V_SB[half]
        csb = V_SB[1 - half]
        mf = pv_mfmas(psb) + qk_mfmas(psb, negm_c)
        g = spread(32, [[r] for r in k_reads(u, half)], 0, 3)
        g = merge(g, spread(32, [[r] for r in v_reads(u, half)], 16, 28))
        g[15].append('s_waitcnt lgkmcnt(0)')
        if half == 0:
            g = merge(g, spread(32, kd + vd, 3, 27))
        else:
            g = merge(g, spread(32, [[a] for a in adv], 3, 15))
            g[31] += kv_addr_advance()
        fill(g, sm_seq(csb), 3, 31)
        if half == 0:
            g[31].append('s_waitcnt lgkmcnt(0)')
        out += weave(mf, g)
    out += [f's_sub_u32 s{S_CNT}, s{S_CNT}, 1', f's_cmp_lg_u32 s{S_CNT}, 0',
            f's_waitcnt vmcnt({(R-2)*8}) lgkmcnt(0)', 's_barrier', 's_cbranch_scc1 L_att']
    return out

def gen_attn(P, stamps=False):
    st = Stamps(stamps)
    T = V_T
    pro = ['attn_kernel:', 's_cmp_ge_u32 s2, 256', 's_cbranch_scc1 L_attn_end',
           's_load_dwordx8 s[4:11], s[0:1], 0', 's_load_dwordx4 s[16:19], s[0:1], 48'] + st() + [
           f'v_lshrrev_b32 v{T}, 6, v0', 'v_and_b32 v0, 63, v0', f'v_readfirstlane_b32 s{S_W}, v{T}',
           f's_and_b32 s{S_B}, s2, 7', f's_lshr_b32 s{S_H}, s2, 3', f's_lshl_b32 s{S_W4K}, s{S_W}, 12',
           f'v_lshrrev_b32 v{T+1}, 3, v0', f'v_and_b32 v{T+2}, 7, v0', f'v_lshrrev_b32 v{T+3}, 4, v0',
           f'v_xor_b32 v{T+2}, v{T+2}, v{T+3}', f'v_lshlrev_b32 v{T+2}, 4, v{T+2}',
           f'v_lshl_add_u32 v{T+2}, v{T+1}, 10, v{T+2}', f'v_lshl_add_u32 v{V_VX}, v{T}, 16, v{T+2}',
           f'v_xor_b32 v{T+2}, 64, v{V_VX}']
    for i in range(1, 8):
        src = T + 2 if i & 1 else V_VX
        pro.append(f'v_add_u32 v{V_VX+i}, {(8*i - i % 4)*1024}, v{src}')
    pro += [f'v_and_b32 v{T+4}, 15, v0', f'v_lshlrev_b32 v{T+5}, 2, v{T+3}', f'v_xor_b32 v{T+5}, v{T+4}, v{T+5}',
            f'v_lshlrev_b32 v{T+5}, 4, v{T+5}',
            f'v_lshl_add_u32 v{V_VV}, v{T+3}, 8, v{T+5}',
            f'v_lshl_add_u32 v{T+6}, v{T}, 4, v{T+3}',
            f'v_lshl_add_u32 v{V_VW}, v{T+6}, 13, v{T+5}']
    for i in range(1, 4): pro.append(f'v_add_u32 v{V_VW+i}, {i*(32768-1024)}, v{V_VW}')
    pro += [f'v_xor_b32 v{T+4}, v{T+4}, v{T+3}', f'v_lshlrev_b32 v{T+4}, 4, v{T+4}', f'v_lshl_add_u32 v{V_VK}, v{T+3}, 8, v{T+4}']
    for i in range(1, 4): pro.append(f'v_xor_b32 v{V_VK+i}, {i << 6}, v{V_VK}')
    pro += ['s_waitcnt lgkmcnt(0)',
            f's_mul_i32 s{S_T0}, s{S_B}, 245760', f's_add_u32 s4, s4, s{S_T0}', 's_addc_u32 s5, s5, 0'] + srd(S_X, 4, 5, 245760)
    pro += [f's_lshl_b32 s{S_T0}, s{S_H}, 8', f's_add_u32 s10, s10, s{S_T0}', 's_addc_u32 s11, s11, 0'] + srd(S_WQ, 10, 11, 0)
    pro += [f's_sub_u32 s{S_WQ+2}, 4194304, s{S_T0}',
            f's_lshl_b32 s{S_T0}, s{S_B}, 5', f's_add_u32 s{S_T0}, s{S_T0}, s{S_H}', f's_lshl_b32 s{S_T0}, s{S_T0}, 17',
            f's_add_u32 s6, s6, s{S_T0}', 's_addc_u32 s7, s7, 0', f's_add_u32 s8, s8, s{S_T0}', 's_addc_u32 s9, s9, 0']
    pro += srd(S_K, 6, 7, 131072) + srd(S_V, 8, 9, 131072)
    pro += [f's_mov_b32 s{S_KC}, s{S_B}', f's_lshl_b32 s{S_XOFF}, s{S_KC}, 7', f's_lshl_b32 s{S_WOFF}, s{S_KC}, 19',
            f's_lshl_b32 s{S_M0X}, s{S_W}, 13', f's_add_u32 s{S_M0X}, s{S_M0X}, {SLOT[1]}']
    flat = lambda gs: [i for g in gs for it in g for i in it]
    pro += flat(q_dma_groups(0)) + q_dma_advance()
    pro += flat([kv_dma_fixed('K', 0)])
    pro += flat(q_dma_groups(1)) + q_dma_advance()
    pro += [f'v_and_b32 v{T+1}, 31, v0', f'v_lshrrev_b32 v{T+2}, 5, v0',
            f'v_bfe_u32 v{T+3}, v0, 1, 3', f'v_xor_b32 v{T+3}, v{T+3}, v{T+2}', f'v_lshlrev_b32 v{T+3}, 4, v{T+3}',
            f'v_lshl_add_u32 v{T+3}, v{T+1}, 7, v{T+3}', f'v_lshl_add_u32 v{T+3}, v{T}, 13, v{T+3}']
    for s in range(4): pro += [f'v_xor_b32 v{V_XA+s}, {s << 5}, v{T+3}', f'v_add_u32 v{V_XA+s}, {SLOT[1]}, v{V_XA+s}']
    pro += [f'v_and_b32 v{T+3}, 15, v0', f'v_xor_b32 v{T+3}, v{T+3}, v{T+2}', f'v_lshlrev_b32 v{T+3}, 4, v{T+3}',
            f'v_lshl_add_u32 v{V_KA}, v{T+1}, 8, v{T+3}']
    for t in range(1, 8): pro.append(f'v_xor_b32 v{V_KA+t}, {t << 5}, v{V_KA}')
    pro += [f'v_bfe_u32 v{T+3}, v0, 2, 2',
            f'v_mul_u32_u24 v{T+4}, 320, v{T+3}',
            f'v_and_b32 v{T+5}, 16, v0', f'v_lshl_add_u32 v{T+4}, v{T+5}, 1, v{T+4}',
            f'v_and_b32 v{T+5}, 3, v0', f'v_lshl_add_u32 v{T+6}, v{T+5}, 3, v{T+4}',
            f'v_lshl_add_u32 v{T+6}, v{T+2}, 10, v{T+6}']
    for i in range(4): pro += [f'v_xor_b32 v{V_VA+i}, {i << 6}, v{T+6}', f'v_add_u32 v{V_VA+i}, 16384, v{V_VA+i}']
    pro += [f'v_and_b32 v{T+5}, 1, v0', f'v_lshl_add_u32 v{T+4}, v{T+5}, 4, v{T+4}',
            f'v_and_b32 v{T+5}, 2, v0', f'v_lshl_add_u32 v{T+4}, v{T+5}, 2, v{T+4}',
            f'v_lshl_add_u32 v{T+4}, v{T+2}, 11, v{T+4}']
    for i in range(4): pro += [f'v_xor_b32 v{V_WA+i}, {i << 6}, v{T+4}', f'v_add_u32 v{V_WA+i}, {SLOT[1] + 32768}, v{V_WA+i}']
    for r in range(V_O, V_O + 128, 2): pro.append(f'v_mov_b64 {vr(r, 2)}, 0')
    pro += [f's_mov_b32 s{S_POS}, {SLOT[1]}', f's_mov_b32 s{S_CNT}, 6', f's_mov_b32 s{S_C}, {CSCALE:#x}', f's_mov_b32 s{S_C+1}, {CSCALE:#x}']
    pro += [f's_lshl_b32 s{S_T0}, s{S_B}, 2', f's_add_u32 s{S_T0}, s{S_T0}, s{S_W}', f's_lshl_b32 s{S_T0}, s{S_T0}, 5',
            f's_add_u32 s{S_T0}, s{S_T0}, s{S_H}', f's_lshl_b32 s{S_T0}, s{S_T0}, 14',
            f's_add_u32 s12, s18, s{S_T0}', 's_addc_u32 s13, s19, 0'] + srd(S_O, 12, 13, 16384)
    pro += ['s_waitcnt vmcnt(16)', 's_barrier'] + st() + q_reads(0, 0, A_F[0]) + ['s_branch L_q_mid']
    P.seg(pro)

    def q_body(s, dmag, last_wait, loop):
        g1 = q_group(A_F[1], q_reads(s, 0, A_F[0]), None)
        rest = q_group(A_F[0], q_reads(s, 1, A_F[1]), dmag[0]) + q_group(A_F[1], q_reads(s, 2, A_F[0]), dmag[1]) \
             + q_group(A_F[0], q_reads(s, 3, A_F[1]), dmag[2])
        tail = q_addr_advance()
        if loop:
            tail += q_dma_advance() + [f's_sub_u32 s{S_CNT}, s{S_CNT}, 1', f's_cmp_lg_u32 s{S_CNT}, 0']
        tail += [f's_waitcnt vmcnt({last_wait}) lgkmcnt(0)', 's_barrier']
        if loop: tail += ['s_cbranch_scc1 L_q']
        return g1, rest + tail
    g1, rest = q_body(0, q_dma_groups(2), 12, True)
    P.seg(rest, code=False)
    bodies = []
    for s in range(1, 6):
        g1, rest = q_body(s, q_dma_groups(s + 2), 12, True)
        bodies.append(['.p2align 3', 'L_q:'] + g1 + ['L_q_mid:'] + rest)
    P.loop(bodies)
    g1, rest = q_body(6, [kv_dma_fixed('V', 0, 'qs0'), kv_dma_fixed('K', 1, 'qs0'), kv_dma_fixed('V', 1, 'qs0')], 12, False)
    P.seg(g1 + rest)
    g1, rest = q_body(7, [kv_dma_fixed('K', 2, 'qs1'), kv_dma_fixed('V', 2, 'qs1'), kv_dma_fixed('K', 3, 'qs1')], 20, False)
    P.seg(g1 + rest)
    dm = kv_dma_fixed('V', 3, 'qs2') + kv_dma_fixed('K', 4, 'qs2') + kv_dma_fixed('V', 4, 'qs2')
    g = merge(spread(8, [[r] for r in k_reads(0, 0)], 0, 4), spread(8, dm[:8], 0, 8))
    P.seg(weave(q_mfmas(A_F[1]), g) + [i for it in dm[8:] for i in it] + st())
    conv = []
    qk0 = qk_mfmas(V_SB[0], lambda qt: '0')
    for T_ in range(4):
        for qt in range(2):
            b = O_(qt, T_)
            for i in range(0, 16, 2): conv.append(f'v_pk_mul_f32 {vr(b+i, 2)}, {vr(b+i, 2)}, {sr(S_C, 2)}')
            for i in range(8): conv.append(f'v_cvt_pk_bf16_f32 v{b+i}, v{b+2*i}, v{b+2*i+1}')
            for i in range(8): conv.append(f'v_accvgpr_write_b32 a{Q_(qt, 2*T_) + i}, v{b+i}')
            for i in range(0, 16, 2): conv.append(f'v_mov_b64 {vr(b+i, 2)}, 0')
    seq = ['s_nop 4', 's_waitcnt lgkmcnt(0)'] + conv[:64]
    for T_ in range(4):
        nxt = conv[64*(T_+1):64*(T_+2)]
        g = [nxt[16*i:16*(i+1)] for i in range(4)]
        seq += weave(qk0[4*T_:4*T_+4], g)
    seq += k_reads(0, 1) + ['s_nop 3']
    sb = V_SB[0]
    for qt in range(2):
        b = sb + 16*qt; m = T + 2*qt
        seq.append(f'v_max3_f32 v{m}, v{b}, v{b+1}, v{b+2}')
        for i in range(3, 15, 2): seq.append(f'v_max3_f32 v{m}, v{m}, v{b+i}, v{b+i+1}')
        seq += [f'v_max_f32 v{m}, v{m}, v{b+15}', f'v_mov_b32 v{m+1}, v{m}']
    seq += [f'v_and_b32 v{T+4}, 31, v0', f's_lshl_b32 s{S_T0}, s{S_W}, 6', f'v_add_u32 v{T+4}, s{S_T0}, v{T+4}',
            f'v_permlane32_swap_b32 v{T}, v{T+1}', f'v_permlane32_swap_b32 v{T+2}, v{T+3}',
            f'v_cmp_lt_u32 vcc, 207, v{T+4}', f'v_mov_b32 v{T+5}, 0xff800000',
            f'v_max_f32 v{T}, v{T}, v{T+1}', f'v_max_f32 v{T+2}, v{T+2}, v{T+3}',
            f'v_sub_f32 v{V_NEGM}, 0, v{T}', f'v_sub_f32 v{T+2}, 0, v{T+2}',
            f'v_cndmask_b32 v{V_NEGM+16}, v{T+2}, v{T+5}, vcc',
            f'v_mov_b32 v{V_NEGM+1}, v{V_NEGM}', f'v_mov_b32 v{V_NEGM+17}, v{V_NEGM+16}']
    for qt in range(2):
        for i in range(2, 16, 2): seq.append(f'v_mov_b64 {vr(V_NEGM+16*qt+i, 2)}, {vr(V_NEGM+16*qt, 2)}')
    seq += [f'v_mov_b64 {vr(V_L, 2)}, 0', 's_waitcnt lgkmcnt(0)']
    sub = [f'v_pk_add_f32 {vr(sb+16*qt+8*tp+i, 2)}, {vr(sb+16*qt+8*tp+i, 2)}, {vr(V_NEGM+16*qt, 2)}' for tp in range(2) for qt in range(2) for i in range(0, 8, 2)]
    g = spread(16, [[r] for r in v_reads(0, 1, region='qs0')], 0, 12)
    g[15] += kv_addr_advance()
    fill(g, sub + sm_seq(sb), 0, 15)
    seq += [f's_mov_b32 s{S_POS}, 0'] + weave(qk_mfmas(V_SB[1], negm_c), g)
    seq += [f's_mov_b32 s{S_CNT}, 7', f's_add_u32 s{S_KOFF}, s{S_W4K}, {R*16384}', f's_add_u32 s{S_VOFF}, s{S_W4K}, {R*16384 - 8192}',
            f's_mov_b32 s{S_M0K}, s{S_W4K}', f's_waitcnt vmcnt({(R-2)*8}) lgkmcnt(0)', 's_barrier'] + st()
    P.seg(seq)
    return st

def retag(P):
    for ins in P.trace:
        if ins.tag and ins.tag[1][0] in 'KV':
            ins.tag = (kv_regions(ins.tag[1][0], int(ins.tag[1][1:])), ins.tag[1], ins.tag[2])

def gen_attn_tail(P, st):
    T = V_T
    P.loop([['.p2align 3', 'L_att:'] + attn_iter(it) for it in range(7)])
    g = spread(16, [[r] for r in v_reads(8, 0, dst=A_KF)], 0, 8)
    fill(g, sm_seq(V_SB[1]), 1, 16)
    seq = st() + weave(pv_mfmas(V_SB[0]), g)
    red = []
    for qt in range(2): red.append(f'v_mov_b32 v{T+qt}, v{V_L+qt}')
    red += [f'v_lshlrev_b32 v{T+4}, 4, v0', 's_nop 0']
    for qt in range(2): red.append(f'v_permlane32_swap_b32 v{V_L+qt}, v{T+qt}')
    for qt in range(2): red.append(f'v_add_f32 v{V_L+qt}, v{V_L+qt}, v{T+qt}')
    for qt in range(2): red.append(f'v_max_f32 v{T+qt}, 0x0da24260, v{V_L+qt}')
    red += [f'v_rcp_f32 v{T+2}, v{T+1}', f'v_rcp_f32 v{T}, v{T}', 's_nop 0', f'v_mov_b32 v{T+3}, v{T+2}', f'v_mov_b32 v{T+1}, v{T}']
    for i in range(4): red.append(f's_mov_b32 s{S_ST+i}, {4096*i}')
    def norm(qt):
        o = []
        rc = vr(T + 1 + 2*qt - 1, 2) if False else None
        for T_ in range(4):
            b = O_(qt, T_)
            for i in range(0, 16, 2): o.append(f'v_pk_mul_f32 {vr(b+i, 2)}, {vr(b+i, 2)}, {vr(V_RC + 2*qt, 2)}')
            for i in range(8): o.append(f'v_cvt_pk_bf16_f32 v{b+i}, v{b+2*i}, v{b+2*i+1}')
            for tp in range(2):
                o.append(f'buffer_store_dwordx4 {vr(b + 4*tp, 4)}, v{T+4}, {sr(S_O, 4)}, s{S_ST+T_} offen offset:{(tp*2+qt)*1024}')
        return o
    V_RC = 28
    red += [f'v_mov_b64 {vr(V_RC, 2)}, {vr(T+1-1+0, 2)}' if False else f'v_mov_b32 v{V_RC}, v{T}', f'v_mov_b32 v{V_RC+1}, v{T}',
            f'v_mov_b32 v{V_RC+2}, v{T+2}', f'v_mov_b32 v{V_RC+3}, v{T+2}']
    pv = pv_mfmas(V_SB[1], vf=A_KF, by_qt=True)
    g = [[] for _ in range(16)]
    fill(g, red, 0, 8)
    n0 = norm(0)
    fill(g, n0[:36], 11, 16)
    seq += ['s_waitcnt lgkmcnt(0)', 's_nop 0'] + weave(pv, g) + n0[36:] + norm(1) + st()
    if st.on:
        seq += ['s_waitcnt vmcnt(0)'] + st() + ['s_waitcnt lgkmcnt(0)']
        seq += [f's_lshl_b32 s{S_T0}, s2, 2', f's_add_u32 s{S_T0}, s{S_T0}, s{S_W}', f's_lshl_b32 s{S_T0}, s{S_T0}, 7',
                f's_add_u32 s{S_T0}, s{S_T0}, 0x2000000', f's_add_u32 s12, s18, s{S_T0}', 's_addc_u32 s13, s19, 0'] + srd(S_O, 12, 13, 128)
        for i in range(st.n):
            seq += [f'v_mov_b32 v2, s{S_STAMP+2*i}', f'v_mov_b32 v3, s{S_STAMP+2*i+1}', 'v_mov_b32 v4, 0',
                    f'buffer_store_dwordx2 v[2:3], v4, {sr(S_O, 4)}, 0 offen offset:{8*i}', 's_nop 1']
    seq += ['L_attn_end:', 's_endpgm']
    P.seg(seq)

def gen_oproj(P, stamps=False):
    st = Stamps(stamps)
    S_OF, S_WO, S_OUT = 20, 24, 28
    S_RG, S_CG, S_OOFF, S_WOOFF, S_LB = 43, 44, 45, 46, 47
    T = 1
    V_OV, V_WV, V_WA2 = 8, 9, 12
    V_ACC = 16
    NB = 8
    V_OF = 80
    A_WF = 0
    RING = 16
    def acc(N, qt): return V_ACC + (N*2 + qt)*16
    pro = ['oproj_kernel:', 's_cmp_ge_u32 s2, 256', 's_cbranch_scc1 L_op_end',
           's_load_dwordx4 s[12:15], s[0:1], 32', 's_load_dwordx4 s[16:19], s[0:1], 48'] + st() + [
           f'v_lshrrev_b32 v{T}, 6, v0', 'v_and_b32 v0, 63, v0', f'v_readfirstlane_b32 s{S_W}, v{T}',
           f's_and_b32 s{S_B}, s2, 7', f's_lshr_b32 s{S_H}, s2, 3', f's_lshr_b32 s{S_RG}, s{S_H}, 3', f's_and_b32 s{S_CG}, s{S_H}, 7',
           f'v_lshlrev_b32 v{V_OV}, 4, v0',
           f'v_lshrrev_b32 v{T+1}, 3, v0', f'v_and_b32 v{T+2}, 7, v0', f'v_and_b32 v{T+3}, 16, v0', f'v_lshrrev_b32 v{T+3}, 2, v{T+3}',
           f'v_xor_b32 v{T+2}, v{T+2}, v{T+3}', f'v_lshlrev_b32 v{T+2}, 4, v{T+2}', f'v_lshl_add_u32 v{V_WV}, v{T+1}, 10, v{T+2}',
           f'v_add_u32 v{V_WV+1}, {8192-1024}, v{V_WV}',
           f'v_bfe_u32 v{T+1}, v0, 2, 2', f'v_lshrrev_b32 v{T+2}, 5, v0', f'v_lshl_add_u32 v{T+2}, v{T+2}, 2, v{T+1}',
           f'v_lshlrev_b32 v{T+2}, 7, v{T+2}', f'v_and_b32 v{T+3}, 8, v0', f'v_lshl_add_u32 v{T+2}, v{T+3}, 3, v{T+2}',
           f'v_and_b32 v{T+3}, 16, v0', f'v_lshl_add_u32 v{T+2}, v{T+3}, 1, v{T+2}',
           f'v_and_b32 v{T+3}, 3, v0', f'v_lshl_add_u32 v{T+2}, v{T+3}, 3, v{T+2}',
           f'v_lshl_add_u32 v{V_WA2}, v{T}, 15, v{T+2}', f'v_xor_b32 v{V_WA2+1}, 64, v{V_WA2}',
           f's_lshl_b32 s{S_LB}, s{S_W}, 15',
           's_waitcnt lgkmcnt(0)',
           f's_lshl_b32 s{S_T0}, s{S_B}, 2', f's_add_u32 s{S_T0}, s{S_T0}, s{S_RG}', f's_lshl_b32 s{S_T0}, s{S_T0}, 2',
           f's_add_u32 s{S_T0}, s{S_T0}, s{S_W}', f's_lshl_b32 s{S_T0}, s{S_T0}, 17',
           f's_add_u32 s4, s18, s{S_T0}', 's_addc_u32 s5, s19, 0'] + srd(S_OF, 4, 5, 131072)
    pro += [f's_lshl_b32 s{S_T0}, s{S_W}, 20', f's_lshl_b32 s{S_T1}, s{S_CG}, 7', f's_add_u32 s{S_T0}, s{S_T0}, s{S_T1}',
            f's_add_u32 s12, s12, s{S_T0}', 's_addc_u32 s13, s13, 0'] + srd(S_WO, 12, 13, 0) + [f's_sub_u32 s{S_WO+2}, 4194304, s{S_T0}']
    pro += [f's_mul_i32 s{S_T0}, s{S_B}, 245760', f's_add_u32 s14, s14, s{S_T0}', 's_addc_u32 s15, s15, 0'] + srd(S_OUT, 14, 15, 245760)
    pro += [f's_mov_b32 s{S_OOFF}, 0', f's_mov_b32 s{S_WOOFF}, 0']
    def issue(ks):
        slot = ks % RING; ob = V_OF + (ks % NB)*8
        tag = (f'w{slot}', f'w{ks}', True)
        return [f's_add_u32 m0, s{S_LB}, {slot*2048}',
                f'buffer_load_dwordx4 {vr(ob, 4)}, v{V_OV}, {sr(S_OF, 4)}, s{S_OOFF} offen',
                dma(V_WV, S_WO, S_WOOFF, 0, False, tag),
                f'buffer_load_dwordx4 {vr(ob+4, 4)}, v{V_OV}, {sr(S_OF, 4)}, s{S_OOFF} offen offset:1024',
                dma(V_WV + 1, S_WO, S_WOOFF, 1024, False, tag),
                f's_add_u32 s{S_OOFF}, s{S_OOFF}, 2048', f's_add_u32 s{S_WOOFF}, s{S_WOOFF}, 16384']
    def wreads(ks):
        slot = ks % RING; f = A_WF + (ks % 2)*8
        return [Ins(f'ds_read_b64_tr_b16 {ar(f + N*4 + u*2, 2)}, v{V_WA2+N} offset:{slot*2048 + 1024*u}', (f'w{slot}', f'w{ks}', True)) for N in range(2) for u in range(2)]
    for ks in range(NB - 1): pro += issue(ks)
    for r in range(V_ACC, V_ACC + 64, 2): pro.append(f'v_mov_b64 {vr(r, 2)}, 0')
    pro += [f's_mov_b32 s{S_CNT}, 4', f's_waitcnt vmcnt({(NB-2)*4})'] + st() + wreads(0)
    P.seg(pro)
    def step(ks):
        f = A_WF + (ks % 2)*8; ob = V_OF + (ks % NB)*8
        mf = [f'{MF} {vr(acc(N, qt), 16)}, {ar(f + N*4, 4)}, {vr(ob + qt*4, 4)}, {vr(acc(N, qt), 16)}' for N in range(2) for qt in range(2)]
        iss = issue(ks + NB - 1)
        g = [iss[:3], iss[3:], [f's_waitcnt vmcnt({(NB-2)*4})'] + wreads(ks + 1), []]
        return ['s_waitcnt lgkmcnt(0)'] + weave(mf, g)
    bodies = []
    for it in range(4):
        b = ['.p2align 3', 'L_op:']
        for k in range(RING): b += step(it*RING + k)
        b += [f's_sub_u32 s{S_CNT}, s{S_CNT}, 1', f's_cmp_lg_u32 s{S_CNT}, 0', 's_cbranch_scc1 L_op']
        bodies.append(b)
    P.loop(bodies)
    seq = ['s_waitcnt vmcnt(0) lgkmcnt(0)'] + st() + ['s_barrier',
           f'v_and_b32 v{T+1}, 31, v0', f'v_lshrrev_b32 v{T+2}, 5, v0', f'v_mul_u32_u24 v{T+1}, 272, v{T+1}',
           f'v_lshl_add_u32 v{T+1}, v{T+2}, 4, v{T+1}', f's_mul_i32 s{S_T0}, s{S_W}, 17408', f'v_add_u32 v{T+1}, s{S_T0}, v{T+1}', 's_nop 4']
    for N in range(2):
        for qt in range(2):
            for g in range(4):
                seq.append(f'ds_write_b128 v{T+1}, {vr(acc(N, qt) + 4*g, 4)} offset:{qt*32*272 + N*128 + g*32}')
    seq += [f'v_lshrrev_b32 v{T+2}, 3, v0', f's_lshl_b32 s{S_T0}, s{S_W}, 4', f'v_add_u32 v{T+2}, s{S_T0}, v{T+2}',
            f'v_and_b32 v{T+3}, 7, v0', f'v_mul_u32_u24 v{T+4}, 272, v{T+2}', f'v_lshl_add_u32 v{T+4}, v{T+3}, 5, v{T+4}',
            f's_lshl_b32 s{S_T0}, s{S_RG}, 6', f'v_add_u32 v{T+2}, s{S_T0}, v{T+2}', f'v_lshlrev_b32 v{T+2}, 10, v{T+2}',
            f'v_lshl_add_u32 v{T+2}, v{T+3}, 4, v{T+2}', f's_lshl_b32 s{S_T1}, s{S_CG}, 7', f's_add_u32 s{S_T0}, s{S_T1}, 8192',
            's_waitcnt lgkmcnt(0)', 's_barrier']
    for i in range(2):
        for p in range(4):
            for hlf in range(2):
                seq.append(f'ds_read_b128 {vr(V_OF + (i*8 + p*2 + hlf)*4, 4)}, v{T+4} offset:{p*17408 + i*8*272 + hlf*16}')
    for i in range(2):
        b = V_OF + i*32
        seq.append(f's_waitcnt lgkmcnt({8 if i == 0 else 0})')
        for j in range(0, 8, 2):
            seq += [f'v_pk_add_f32 {vr(b+j, 2)}, {vr(b+j, 2)}, {vr(b+8+j, 2)}', f'v_pk_add_f32 {vr(b+16+j, 2)}, {vr(b+16+j, 2)}, {vr(b+24+j, 2)}']
        for j in range(0, 8, 2): seq.append(f'v_pk_add_f32 {vr(b+j, 2)}, {vr(b+j, 2)}, {vr(b+16+j, 2)}')
        for j in range(4): seq.append(f'v_cvt_pk_bf16_f32 v{b+j}, v{b+2*j}, v{b+2*j+1}')
        seq.append(f'buffer_store_dwordx4 {vr(b, 4)}, v{T+2}, {sr(S_OUT, 4)}, s{S_T0 if i else S_T1} offen')
    if st.on:
        seq += ['s_waitcnt vmcnt(0)'] + st() + ['s_waitcnt lgkmcnt(0)']
        seq += [f's_lshl_b32 s{S_T0}, s2, 2', f's_add_u32 s{S_T0}, s{S_T0}, s{S_W}', f's_lshl_b32 s{S_T0}, s{S_T0}, 7',
                f's_add_u32 s{S_T0}, s{S_T0}, 0x2100000', f's_add_u32 s12, s18, s{S_T0}', 's_addc_u32 s13, s19, 0'] + srd(S_OF, 12, 13, 128)
        for i in range(st.n):
            seq += [f'v_mov_b32 v2, s{S_STAMP+2*i}', f'v_mov_b32 v3, s{S_STAMP+2*i+1}', 'v_mov_b32 v4, 0',
                    f'buffer_store_dwordx2 v[2:3], v4, {sr(S_OF, 4)}, 0 offen offset:{8*i}', 's_nop 1']
    seq += ['L_op_end:', 's_endpgm']
    P.seg(seq)

HEADER = open('standalone__gqa_block_cached__near_ridge.s.ref').read().split('; Override')[0]

def kd(name, nv, accum, ns=102):
    return f'''.amdhsa_kernel {name}
  .amdhsa_next_free_vgpr {nv}
  .amdhsa_next_free_sgpr {ns}
  .amdhsa_accum_offset {accum}
  .amdhsa_group_segment_fixed_size 0
  .amdhsa_kernarg_size 64
  .amdhsa_user_sgpr_count 2
  .amdhsa_user_sgpr_kernarg_segment_ptr 1
  .amdhsa_system_sgpr_workgroup_id_x 1
.end_amdhsa_kernel
'''

def build(stamps=False):
    P1 = Prog(); st = gen_attn(P1, stamps); gen_attn_tail(P1, st)
    e1 = check(P1.trace[:], 'attn-slots')
    e1 = [e for e in e1 if 'LDS read of' not in e or "'st" in e]
    retag(P1)
    e2 = [e for e in check(P1.trace, 'attn')]
    P2 = Prog(); gen_oproj(P2, stamps)
    e3 = check(P2.trace, 'oproj')
    errs = sorted(set(e1 + e2)) + e3
    for e in errs[:40]: print('CHECK:', e, file=sys.stderr)
    txt = HEADER
    txt += '; @launch kernel=attn_kernel grid=(256,1,1) block=(256,1,1) lds=163840\n'
    txt += '; @launch kernel=oproj_kernel grid=(256,1,1) block=(256,1,1) lds=131072\n'
    txt += '.amdgcn_target "amdgcn-amd-amdhsa--gfx950"\n.text\n'
    for name, P in (('attn_kernel', P1), ('oproj_kernel', P2)):
        txt += f'.globl {name}\n.p2align 8\n.type {name},@function\n' + P.text()
    txt += '.section .rodata,"a"\n.p2align 6\n' + kd('attn_kernel', 432, 256) + '.p2align 6\n' + kd('oproj_kernel', 160, 144)
    return txt, errs

if __name__ == '__main__':
    stamps = '--stamps' in sys.argv
    out = [a for a in sys.argv[1:] if not a.startswith('--')]
    txt, errs = build(stamps)
    open(out[0] if out else 'standalone__gqa_block_cached__near_ridge.s', 'w').write(txt)
    print('errors:', len(errs))
```

```python
import struct, math, sys
from asmlib import *

def f2u(x): return struct.unpack('<I', struct.pack('<f', x))[0]
CSCALE = f2u(math.log2(math.e) / math.sqrt(128.0))
MF = 'v_mfma_f32_32x32x16_bf16'

def vr(b, n=1): return f'v{b}' if n == 1 else f'v[{b}:{b+n-1}]'
def ar(b, n=1): return f'a{b}' if n == 1 else f'a[{b}:{b+n-1}]'
def sr(b, n=1): return f's{b}' if n == 1 else f's[{b}:{b+n-1}]'

S_X, S_WQ, S_K, S_V, S_O = 20, 24, 28, 32, 36
S_B, S_H, S_W = 40, 41, 42
S_KC, S_XOFF, S_WOFF, S_M0X, S_DELTA, S_CNT, S_T0, S_T1 = 43, 44, 45, 46, 47, 48, 49, 50
S_KOFF, S_VOFF, S_M0K, S_POS, S_C = 51, 52, 53, 54, 56
S_W4K = 58
S_ST = 60
S_STAMP = 64
V_KA, V_VA, V_VK, V_VV, V_L = 8, 16, 20, 24, 26
V_T = 1
V_SB = [32, 64]
V_VX, V_VW, V_XA, V_WA = 32, 40, 44, 48
V_NEGM = 96
V_O = 128
A_Q, A_KF, A_VF, A_F = 0, 64, 96, [128, 152]
R = 5
SLOT = [16384, 65536, 114688]

def O_(qt, T): return V_O + (qt * 4 + T) * 16
def Q_(qt, t): return A_Q + (qt * 8 + t) * 4

V_STAMP = 25
DBGWG = None
DBGOFF = 0
class Stamps:
    def __init__(self, on): self.on = on; self.n = 0
    def __call__(self, first=False):
        if not self.on: return []
        pre = [f's_mov_b32 s{S_STAMP+2}, 0'] if first else []
        return pre + [f's_memtime {sr(S_STAMP, 2)}', f's_mov_b32 m0, s{S_STAMP+2}', 's_waitcnt lgkmcnt(0)', f'v_writelane_b32 v{V_STAMP}, s{S_STAMP}, m0',
                      f's_add_u32 s{S_STAMP+2}, s{S_STAMP+2}, 1']
    def dump(self, base, srdreg):
        if not self.on: return []
        return ['s_waitcnt vmcnt(0)'] + self() + [f's_memrealtime {sr(S_STAMP, 2)}', 's_waitcnt lgkmcnt(0)', f'v_writelane_b32 v{V_STAMP}, s{S_STAMP}, 63',
                f'v_writelane_b32 v{V_STAMP}, s{S_STAMP+4}, 62', f'v_writelane_b32 v{V_STAMP}, s{S_STAMP+2}, 61',
                f's_lshl_b32 s{S_T0}, s2, 2', f's_add_u32 s{S_T0}, s{S_T0}, s{S_W}', f's_lshl_b32 s{S_T0}, s{S_T0}, 8',
                f's_add_u32 s{S_T0}, s{S_T0}, {base:#x}', f's_add_u32 s12, s18, s{S_T0}', 's_addc_u32 s13, s19, 0'] + srd(srdreg, 12, 13, 256) + [
                'v_lshlrev_b32 v4, 2, v0', f'buffer_store_dword v{V_STAMP}, v4, {sr(srdreg, 4)}, 0 offen'] + self.dbg(srdreg)
    def dbg(self, srdreg):
        if DBGWG is None: return []
        return [f's_lshl_b32 s{S_T0}, s2, 2', f's_add_u32 s{S_T0}, s{S_T0}, s{S_W}', f's_cmp_eq_u32 s{S_T0}, {DBGWG*4}', f's_cselect_b32 s{S_T1}, 64, 0',
                f's_mov_b32 s{srdreg}, s16', f's_mov_b32 s{srdreg+1}, s17', f's_mov_b32 s{srdreg+2}, s{S_T1}',
                f'v_readlane_b32 s{S_T0}, v{V_STAMP}, 0', f's_sub_u32 s{S_T1}, s{S_STAMP}, s{S_STAMP+4}', 's_nop 1',
                f'v_subrev_u32 v5, s{S_T0}, v{V_STAMP}', f'v_writelane_b32 v5, s{S_T1}, {DBGOFF}', f'v_subrev_u32 v4, {DBGOFF*4}, v4', 's_nop 1',
                f'buffer_store_dword v5, v4, {sr(srdreg, 4)}, 0 offen']
    def start(self):
        if not self.on: return []
        return [f's_memrealtime {sr(S_STAMP+4, 2)}'] + self(True)

def srd(d, lo, hi, size):
    return [f's_mov_b32 s{d}, s{lo}', f's_mov_b32 s{d+1}, s{hi}', f's_mov_b32 s{d+2}, {size}', f's_mov_b32 s{d+3}, 0x00020000']

def dma(voff, srdreg, soff, imm, nt, tag):
    return Ins(f'buffer_load_dwordx4 v{voff}, {sr(srdreg, 4)}, s{soff} offen offset:{imm}{" nt" if nt else ""} lds', tag)

def spread(n, items, start=0, end=None):
    end = n if end is None else end
    g = [[] for _ in range(n)]
    for i, it in enumerate(items):
        g[start + i * (end - start) // len(items)] += it
    return g

def merge(*gs):
    return [sum((g[i] for g in gs), []) for i in range(len(gs[0]))]

COST = {'v_exp_f32': 8}
def cost(ins):
    t = ins.text if isinstance(ins, Ins) else ins
    mn = t.split()[0]
    if mn == 'v_exp_f32': return 8
    if mn.startswith('buffer_load'): return 24
    return 4

def fill(gaps, seq, start, end):
    base = [sum(cost(x) for x in g) for g in gaps]
    tot = sum(base[start:end]) + sum(cost(x) for x in seq)
    n = end - start
    k = 0; acc = 0
    for gi in range(start, end):
        acc += base[gi]
        target = tot * (gi - start + 1) / n
        while k < len(seq) and (acc + cost(seq[k]) / 2 <= target or gi == end - 1):
            gaps[gi].append(seq[k]); acc += cost(seq[k]); k += 1
    return gaps

def q_reads(s, k, F):
    slot = (s + 1) % 3
    out = []
    for T in range(4):
        for u in range(2):
            out.append(Ins(f'ds_read_b64_tr_b16 {ar(F + T*4 + u*2, 2)}, v{V_WA+T} offset:{4096*k + 1024*u}', (f'qs{slot}', f'st{s}', False)))
    for qt in range(2):
        out.append(Ins(f'ds_read_b128 {ar(F + 16 + qt*4, 4)}, v{V_XA+k} offset:{4096*qt}', (f'qs{slot}', f'st{s}', False)))
    return out

def q_mfmas(F):
    return [f'{MF} {vr(O_(qt, T), 16)}, {ar(F + T*4, 4)}, {ar(F + 16 + qt*4, 4)}, {vr(O_(qt, T), 16)}' for T in range(4) for qt in range(2)]

def q_dma_groups(s):
    slot = (s + 1) % 3
    tag = (f'qs{slot}', f'st{s}', False)
    ga = [[f's_mov_b32 m0, s{S_M0X}', 's_nop 0', dma(V_VX + 0, S_X, S_XOFF, 0, False, tag)]] + [[dma(V_VX + i, S_X, S_XOFF, 1024*i, False, tag)] for i in range(1, 4)]
    gb = [[f's_add_u32 m0, s{S_M0X}, 4096', 's_nop 0', dma(V_VX + 4, S_X, S_XOFF, 0, False, tag)]] + [[dma(V_VX + 4 + i, S_X, S_XOFF, 1024*i, False, tag)] for i in range(1, 4)]
    gc = [[f's_sub_u32 s{S_T0}, s{S_M0X}, s{S_W4K}', f's_add_u32 m0, s{S_T0}, 32768', 's_nop 0', dma(V_VW + 0, S_WQ, S_WOFF, 0, False, tag)]] + [[dma(V_VW + i, S_WQ, S_WOFF, 1024*i, False, tag)] for i in range(1, 4)]
    return ga, gb, gc

def q_dma_advance():
    return [f's_add_u32 s{S_KC}, s{S_KC}, 1', f's_and_b32 s{S_KC}, s{S_KC}, 7',
            f's_lshl_b32 s{S_XOFF}, s{S_KC}, 7', f's_lshl_b32 s{S_WOFF}, s{S_KC}, 19',
            f's_add_u32 s{S_M0X}, s{S_M0X}, 49152', f's_cmp_ge_u32 s{S_M0X}, 163840',
            f's_cselect_b32 s{S_T0}, 147456, 0', f's_sub_u32 s{S_M0X}, s{S_M0X}, s{S_T0}']

def kv_regions(kind, u):
    return f'{kind}{u % R}'

def kv_dma_fixed(kind, u, alias=None):
    pos = (u % R) * 32768 + (16384 if kind == 'V' else 0)
    tag = (alias or kv_regions(kind, u), f'{kind}{u}', False)
    if kind == 'K':
        pre = [f's_add_u32 s{S_T1}, s{S_W4K}, {u*16384}', f's_add_u32 m0, s{S_W4K}, {pos}', 's_nop 0']
        return [pre + [dma(V_VK, S_K, S_T1, 0, True, tag)]] + [[dma(V_VK + i, S_K, S_T1, 1024*i, True, tag)] for i in range(1, 4)]
    if u == 0:
        pre = [f's_and_b32 s{S_T1}, s{S_W4K}, 4096', f's_add_u32 m0, s{S_W4K}, {pos}', 's_nop 0']
    else:
        pre = [f's_add_u32 s{S_T1}, s{S_W4K}, {u*16384 - 8192}', f's_add_u32 m0, s{S_W4K}, {pos}', 's_nop 0']
    return [pre + [dma(V_VV, S_V, S_T1, 0, True, tag)]] + [[dma(V_VV, S_V, S_T1, 1024*i, True, tag)] for i in range(1, 4)]

def q_group(F, reads, dmag):
    g = spread(8, [[r] for r in reads], 0, 5)
    if dmag: g = merge(g, spread(8, dmag, 4, 8))
    return ['s_waitcnt lgkmcnt(0)'] + weave(q_mfmas(F), g)

def q_addr_advance():
    out = [f's_add_u32 s{S_POS}, s{S_POS}, 49152', f's_cmp_ge_u32 s{S_POS}, 163840',
           f's_cselect_b32 s{S_T0}, 147456, 0', f's_sub_u32 s{S_DELTA}, 49152, s{S_T0}', f's_sub_u32 s{S_POS}, s{S_POS}, s{S_T0}']
    out += [f'v_add_u32 v{V_XA+i}, s{S_DELTA}, v{V_XA+i}' for i in range(4)]
    out += [f'v_add_u32 v{V_WA+i}, s{S_DELTA}, v{V_WA+i}' for i in range(4)]
    return out

def k_reads(u, half, dst=A_KF, region=None):
    return [Ins(f'ds_read_b128 {ar(dst + 4*t, 4)}, v{V_KA+t} offset:{8192*half}', (region or kv_regions('K', u), f'K{u}', False)) for t in range(8)]

def v_reads(u, half, dst=A_VF, region=None):
    out = []
    for tp in range(2):
        for T in range(4):
            for uu in range(2):
                out.append(Ins(f'ds_read_b64_tr_b16 {ar(dst + (tp*4+T)*4 + uu*2, 2)}, v{V_VA+T} offset:{8192*half + 4096*tp + 2048*uu}', (region or kv_regions('V', u), f'V{u}', False)))
    return out

def qk_mfmas(sb, first_c):
    out = []
    for t in range(8):
        for qt in range(2):
            d = vr(sb + 16*qt, 16)
            c = d if t else first_c(qt)
            out.append(f'{MF} {d}, {ar(A_KF + 4*t, 4)}, {ar(Q_(qt, t), 4)}, {c}')
    return out

def pv_mfmas(sb, vf=A_VF, by_qt=False):
    order = [(tp, T, qt) for tp in range(2) for T in range(4) for qt in range(2)]
    if by_qt: order = [(tp, T, qt) for qt in range(2) for tp in range(2) for T in range(4)]
    return [f'{MF} {vr(O_(qt, T), 16)}, {ar(vf + (tp*4+T)*4, 4)}, {vr(sb + 16*qt + 8*tp, 4)}, {vr(O_(qt, T), 16)}' for tp, T, qt in order]

def sm_seq(sb):
    regs = [(qt, sb + 16*qt + 8*tp + i, sb + 16*qt + 8*tp) for tp in range(2) for qt in range(2) for i in range(8)]
    out = []
    def post(k):
        qt, r, base = regs[k]
        o = [f'v_add_f32 v{V_L+qt}, v{V_L+qt}, v{r}']
        if (r - base) & 1:
            o.append(f'v_cvt_pk_bf16_f32 v{base + (r - base)//2}, v{r-1}, v{r}')
        return o
    for k in range(32):
        out.append(f'v_exp_f32 v{regs[k][1]}, v{regs[k][1]}')
        if k: out += post(k - 1)
    out += ['s_nop 0'] + post(31)
    return out

def kv_addr_advance():
    out = [f's_add_u32 s{S_POS}, s{S_POS}, 32768', f's_cmp_ge_u32 s{S_POS}, {R*32768}',
           f's_cselect_b32 s{S_T0}, {R*32768}, 0', f's_sub_u32 s{S_DELTA}, 32768, s{S_T0}', f's_sub_u32 s{S_POS}, s{S_POS}, s{S_T0}']
    out += [f'v_add_u32 v{V_KA+i}, s{S_DELTA}, v{V_KA+i}' for i in range(8)]
    out += [f'v_add_u32 v{V_VA+i}, s{S_DELTA}, v{V_VA+i}' for i in range(4)]
    return out

def negm_c(qt): return vr(V_NEGM + 16*qt, 16)

def attn_iter(it):
    u = it + 1
    ktag = (kv_regions('K', it + R), f'K{it+R}', False)
    vtag = (kv_regions('V', it + R), f'V{it+R}', False)
    kd = [[f's_mov_b32 m0, s{S_M0K}', 's_nop 0', dma(V_VK, S_K, S_KOFF, 0, True, ktag)]] + [[dma(V_VK + i, S_K, S_KOFF, 1024*i, True, ktag)] for i in range(1, 4)]
    vd = [[f's_add_u32 m0, s{S_M0K}, 16384', 's_nop 0', dma(V_VV, S_V, S_VOFF, 0, True, vtag)]] + [[dma(V_VV, S_V, S_VOFF, 1024*i, True, vtag)] for i in range(1, 4)]
    adv = [f's_add_u32 s{S_KOFF}, s{S_KOFF}, 16384', f's_add_u32 s{S_VOFF}, s{S_VOFF}, 16384',
           f's_add_u32 s{S_M0K}, s{S_M0K}, 32768', f's_cmp_ge_u32 s{S_M0K}, {R*32768}',
           f's_cselect_b32 s{S_T0}, {R*32768}, 0', f's_sub_u32 s{S_M0K}, s{S_M0K}, s{S_T0}']
    out = []
    for half in range(2):
        psb = V_SB[half]
        csb = V_SB[1 - half]
        mf = pv_mfmas(psb) + qk_mfmas(psb, negm_c)
        g = spread(32, [[r] for r in k_reads(u, half)], 0, 3)
        g = merge(g, spread(32, [[r] for r in v_reads(u, half)], 16, 28))
        g[15].append('s_waitcnt lgkmcnt(0)')
        if half == 0:
            g = merge(g, spread(32, kd + vd, 3, 27))
        else:
            g = merge(g, spread(32, [[a] for a in adv], 3, 15))
            g[31] += kv_addr_advance()
        fill(g, sm_seq(csb), 3, 31)
        if half == 0:
            g[31].append('s_waitcnt lgkmcnt(0)')
        out += weave(mf, g)
    out += [f's_sub_u32 s{S_CNT}, s{S_CNT}, 1', f's_cmp_lg_u32 s{S_CNT}, 0',
            f's_waitcnt vmcnt({(R-2)*8}) lgkmcnt(0)', 's_barrier', 's_cbranch_scc1 L_att']
    return out

def gen_attn(P, stamps=False):
    st = Stamps(stamps)
    T = V_T
    pro = ['attn_kernel:', 's_cmp_ge_u32 s2, 256', 's_cbranch_scc1 L_attn_end',
           's_load_dwordx8 s[4:11], s[0:1], 0', 's_load_dwordx4 s[16:19], s[0:1], 48'] + st.start() + [
           f'v_lshrrev_b32 v{T}, 6, v0', 'v_and_b32 v0, 63, v0', f'v_readfirstlane_b32 s{S_W}, v{T}',
           f's_and_b32 s{S_B}, s2, 7', f's_lshr_b32 s{S_H}, s2, 3', f's_lshl_b32 s{S_W4K}, s{S_W}, 12',
           f'v_lshrrev_b32 v{T+1}, 3, v0', f'v_and_b32 v{T+2}, 7, v0', f'v_lshrrev_b32 v{T+3}, 4, v0',
           f'v_xor_b32 v{T+2}, v{T+2}, v{T+3}', f'v_lshlrev_b32 v{T+2}, 4, v{T+2}',
           f'v_lshl_add_u32 v{T+2}, v{T+1}, 10, v{T+2}', f'v_lshl_add_u32 v{V_VX}, v{T}, 16, v{T+2}',
           f'v_xor_b32 v{T+2}, 64, v{V_VX}']
    for i in range(1, 8):
        src = T + 2 if i & 1 else V_VX
        pro.append(f'v_add_u32 v{V_VX+i}, {(8*i - i % 4)*1024}, v{src}')
    pro += [f'v_and_b32 v{T+4}, 15, v0', f'v_lshlrev_b32 v{T+5}, 2, v{T+3}', f'v_xor_b32 v{T+5}, v{T+4}, v{T+5}',
            f'v_lshlrev_b32 v{T+5}, 4, v{T+5}',
            f'v_lshl_add_u32 v{V_VV}, v{T+3}, 8, v{T+5}',
            f'v_lshl_add_u32 v{T+6}, v{T}, 4, v{T+3}',
            f'v_lshl_add_u32 v{V_VW}, v{T+6}, 13, v{T+5}']
    for i in range(1, 4): pro.append(f'v_add_u32 v{V_VW+i}, {i*(32768-1024)}, v{V_VW}')
    pro += [f'v_xor_b32 v{T+4}, v{T+4}, v{T+3}', f'v_lshlrev_b32 v{T+4}, 4, v{T+4}', f'v_lshl_add_u32 v{V_VK}, v{T+3}, 8, v{T+4}']
    for i in range(1, 4): pro.append(f'v_xor_b32 v{V_VK+i}, {i << 6}, v{V_VK}')
    pro += ['s_waitcnt lgkmcnt(0)',
            f's_mul_i32 s{S_T0}, s{S_B}, 245760', f's_add_u32 s4, s4, s{S_T0}', 's_addc_u32 s5, s5, 0'] + srd(S_X, 4, 5, 245760)
    pro += [f's_lshl_b32 s{S_T0}, s{S_H}, 8', f's_add_u32 s10, s10, s{S_T0}', 's_addc_u32 s11, s11, 0'] + srd(S_WQ, 10, 11, 0)
    pro += [f's_sub_u32 s{S_WQ+2}, 4194304, s{S_T0}',
            f's_lshl_b32 s{S_T0}, s{S_B}, 5', f's_add_u32 s{S_T0}, s{S_T0}, s{S_H}', f's_lshl_b32 s{S_T0}, s{S_T0}, 17',
            f's_add_u32 s6, s6, s{S_T0}', 's_addc_u32 s7, s7, 0', f's_add_u32 s8, s8, s{S_T0}', 's_addc_u32 s9, s9, 0']
    pro += srd(S_K, 6, 7, 131072) + srd(S_V, 8, 9, 131072)
    pro += [f's_add_u32 s{S_KC}, s{S_B}, s{S_H}', f's_and_b32 s{S_KC}, s{S_KC}, 7', f's_lshl_b32 s{S_XOFF}, s{S_KC}, 7', f's_lshl_b32 s{S_WOFF}, s{S_KC}, 19',
            f's_lshl_b32 s{S_M0X}, s{S_W}, 13', f's_add_u32 s{S_M0X}, s{S_M0X}, {SLOT[1]}']
    flat = lambda gs: [i for g in gs for it in g for i in it]
    pro += flat(q_dma_groups(0)) + q_dma_advance()
    pro += flat([kv_dma_fixed('K', 0)])
    pro += flat(q_dma_groups(1)) + q_dma_advance()
    pro += [f'v_and_b32 v{T+1}, 31, v0', f'v_lshrrev_b32 v{T+2}, 5, v0',
            f'v_bfe_u32 v{T+3}, v0, 1, 3', f'v_xor_b32 v{T+3}, v{T+3}, v{T+2}', f'v_lshlrev_b32 v{T+3}, 4, v{T+3}',
            f'v_lshl_add_u32 v{T+3}, v{T+1}, 7, v{T+3}', f'v_lshl_add_u32 v{T+3}, v{T}, 13, v{T+3}']
    for s in range(4): pro += [f'v_xor_b32 v{V_XA+s}, {s << 5}, v{T+3}', f'v_add_u32 v{V_XA+s}, {SLOT[1]}, v{V_XA+s}']
    pro += [f'v_and_b32 v{T+3}, 15, v0', f'v_xor_b32 v{T+3}, v{T+3}, v{T+2}', f'v_lshlrev_b32 v{T+3}, 4, v{T+3}',
            f'v_lshl_add_u32 v{V_KA}, v{T+1}, 8, v{T+3}']
    for t in range(1, 8): pro.append(f'v_xor_b32 v{V_KA+t}, {t << 5}, v{V_KA}')
    pro += [f'v_bfe_u32 v{T+3}, v0, 2, 2',
            f'v_mul_u32_u24 v{T+4}, 320, v{T+3}',
            f'v_and_b32 v{T+5}, 16, v0', f'v_lshl_add_u32 v{T+4}, v{T+5}, 1, v{T+4}',
            f'v_and_b32 v{T+5}, 3, v0', f'v_lshl_add_u32 v{T+6}, v{T+5}, 3, v{T+4}',
            f'v_lshl_add_u32 v{T+6}, v{T+2}, 10, v{T+6}']
    for i in range(4): pro += [f'v_xor_b32 v{V_VA+i}, {i << 6}, v{T+6}', f'v_add_u32 v{V_VA+i}, 16384, v{V_VA+i}']
    pro += [f'v_and_b32 v{T+5}, 1, v0', f'v_lshl_add_u32 v{T+4}, v{T+5}, 4, v{T+4}',
            f'v_and_b32 v{T+5}, 2, v0', f'v_lshl_add_u32 v{T+4}, v{T+5}, 2, v{T+4}',
            f'v_lshl_add_u32 v{T+4}, v{T+2}, 11, v{T+4}']
    for i in range(4): pro += [f'v_xor_b32 v{V_WA+i}, {i << 6}, v{T+4}', f'v_add_u32 v{V_WA+i}, {SLOT[1] + 32768}, v{V_WA+i}']
    for r in range(V_O, V_O + 128, 2): pro.append(f'v_mov_b64 {vr(r, 2)}, 0')
    pro += [f's_mov_b32 s{S_POS}, {SLOT[1]}', f's_mov_b32 s{S_CNT}, 6', f's_mov_b32 s{S_C}, {CSCALE:#x}', f's_mov_b32 s{S_C+1}, {CSCALE:#x}']
    pro += [f's_lshl_b32 s{S_T0}, s{S_B}, 2', f's_add_u32 s{S_T0}, s{S_T0}, s{S_W}', f's_lshl_b32 s{S_T0}, s{S_T0}, 5',
            f's_add_u32 s{S_T0}, s{S_T0}, s{S_H}', f's_lshl_b32 s{S_T0}, s{S_T0}, 14',
            f's_add_u32 s12, s18, s{S_T0}', 's_addc_u32 s13, s19, 0'] + srd(S_O, 12, 13, 16384)
    pro += ['s_waitcnt vmcnt(16)', 's_barrier'] + st() + q_reads(0, 0, A_F[0]) + ['s_branch L_q_mid']
    P.seg(pro)

    def q_body(s, dmag, last_wait, loop):
        g1 = q_group(A_F[1], q_reads(s, 0, A_F[0]), None)
        rest = q_group(A_F[0], q_reads(s, 1, A_F[1]), dmag[0]) + q_group(A_F[1], q_reads(s, 2, A_F[0]), dmag[1]) \
             + q_group(A_F[0], q_reads(s, 3, A_F[1]), dmag[2])
        tail = q_addr_advance()
        if loop:
            tail += q_dma_advance() + [f's_sub_u32 s{S_CNT}, s{S_CNT}, 1', f's_cmp_lg_u32 s{S_CNT}, 0']
        tail += [f's_waitcnt vmcnt({last_wait}) lgkmcnt(0)', 's_barrier']
        if loop: tail += ['s_cbranch_scc1 L_q']
        return g1, rest + tail
    g1, rest = q_body(0, q_dma_groups(2), 12, True)
    P.seg(rest, code=False)
    bodies = []
    for s in range(1, 6):
        g1, rest = q_body(s, q_dma_groups(s + 2), 12, True)
        bodies.append(['.p2align 3', 'L_q:'] + st() + g1 + ['L_q_mid:'] + rest)
    P.loop(bodies)
    g1, rest = q_body(6, [kv_dma_fixed('V', 0, 'qs0'), kv_dma_fixed('K', 1, 'qs0'), kv_dma_fixed('V', 1, 'qs0')], 12, False)
    P.seg(st() + g1 + rest)
    g1, rest = q_body(7, [kv_dma_fixed('K', 2, 'qs1'), kv_dma_fixed('V', 2, 'qs1'), kv_dma_fixed('K', 3, 'qs1')], 20, False)
    P.seg(st() + g1 + rest + st())
    dm = kv_dma_fixed('V', 3, 'qs2') + kv_dma_fixed('K', 4, 'qs2') + kv_dma_fixed('V', 4, 'qs2')
    g = merge(spread(8, [[r] for r in k_reads(0, 0)], 0, 4), spread(8, dm[:8], 0, 8))
    P.seg(weave(q_mfmas(A_F[1]), g) + [i for it in dm[8:] for i in it] + st())
    conv = []
    qk0 = qk_mfmas(V_SB[0], lambda qt: '0')
    for T_ in range(4):
        for qt in range(2):
            b = O_(qt, T_)
            for i in range(0, 16, 2): conv.append(f'v_pk_mul_f32 {vr(b+i, 2)}, {vr(b+i, 2)}, {sr(S_C, 2)}')
            for i in range(8): conv.append(f'v_cvt_pk_bf16_f32 v{b+i}, v{b+2*i}, v{b+2*i+1}')
            for i in range(8): conv.append(f'v_accvgpr_write_b32 a{Q_(qt, 2*T_) + i}, v{b+i}')
            for i in range(0, 16, 2): conv.append(f'v_mov_b64 {vr(b+i, 2)}, 0')
    seq = ['s_nop 4', 's_waitcnt lgkmcnt(0)'] + conv[:64]
    for T_ in range(4):
        nxt = conv[64*(T_+1):64*(T_+2)]
        g = [nxt[16*i:16*(i+1)] for i in range(4)]
        seq += weave(qk0[4*T_:4*T_+4], g)
    seq += k_reads(0, 1) + ['s_nop 3']
    sb = V_SB[0]
    for qt in range(2):
        b = sb + 16*qt; m = T + 2*qt
        seq.append(f'v_max3_f32 v{m}, v{b}, v{b+1}, v{b+2}')
        for i in range(3, 15, 2): seq.append(f'v_max3_f32 v{m}, v{m}, v{b+i}, v{b+i+1}')
        seq += [f'v_max_f32 v{m}, v{m}, v{b+15}', f'v_mov_b32 v{m+1}, v{m}']
    seq += [f'v_and_b32 v{T+4}, 31, v0', f's_lshl_b32 s{S_T0}, s{S_W}, 6', f'v_add_u32 v{T+4}, s{S_T0}, v{T+4}',
            f'v_permlane32_swap_b32 v{T}, v{T+1}', f'v_permlane32_swap_b32 v{T+2}, v{T+3}',
            f'v_cmp_lt_u32 vcc, 207, v{T+4}', f'v_mov_b32 v{T+5}, 0xff800000',
            f'v_max_f32 v{T}, v{T}, v{T+1}', f'v_max_f32 v{T+2}, v{T+2}, v{T+3}',
            f'v_sub_f32 v{V_NEGM}, 0, v{T}', f'v_sub_f32 v{T+2}, 0, v{T+2}',
            f'v_cndmask_b32 v{V_NEGM+16}, v{T+2}, v{T+5}, vcc',
            f'v_mov_b32 v{V_NEGM+1}, v{V_NEGM}', f'v_mov_b32 v{V_NEGM+17}, v{V_NEGM+16}']
    for qt in range(2):
        for i in range(2, 16, 2): seq.append(f'v_mov_b64 {vr(V_NEGM+16*qt+i, 2)}, {vr(V_NEGM+16*qt, 2)}')
    seq += [f'v_mov_b64 {vr(V_L, 2)}, 0', 's_waitcnt lgkmcnt(0)']
    sub = [f'v_pk_add_f32 {vr(sb+16*qt+8*tp+i, 2)}, {vr(sb+16*qt+8*tp+i, 2)}, {vr(V_NEGM+16*qt, 2)}' for tp in range(2) for qt in range(2) for i in range(0, 8, 2)]
    g = spread(16, [[r] for r in v_reads(0, 1, region='qs0')], 0, 12)
    g[15] += kv_addr_advance()
    fill(g, sub + sm_seq(sb), 0, 15)
    seq += [f's_mov_b32 s{S_POS}, 0'] + weave(qk_mfmas(V_SB[1], negm_c), g)
    seq += [f's_mov_b32 s{S_CNT}, 7', f's_add_u32 s{S_KOFF}, s{S_W4K}, {R*16384}', f's_add_u32 s{S_VOFF}, s{S_W4K}, {R*16384 - 8192}',
            f's_mov_b32 s{S_M0K}, s{S_W4K}', f's_waitcnt vmcnt({(R-2)*8}) lgkmcnt(0)', 's_barrier']
    P.seg(seq)
    return st

def retag(P):
    for ins in P.trace:
        if ins.tag and ins.tag[1][0] in 'KV':
            ins.tag = (kv_regions(ins.tag[1][0], int(ins.tag[1][1:])), ins.tag[1], ins.tag[2])

def gen_attn_tail(P, st):
    T = V_T
    P.loop([['.p2align 3', 'L_att:'] + st() + attn_iter(it) for it in range(7)])
    g = spread(16, [[r] for r in v_reads(8, 0, dst=A_KF)], 0, 8)
    fill(g, sm_seq(V_SB[1]), 1, 16)
    seq = st() + weave(pv_mfmas(V_SB[0]), g)
    red = []
    for qt in range(2): red.append(f'v_mov_b32 v{T+qt}, v{V_L+qt}')
    red += [f'v_lshlrev_b32 v{T+4}, 4, v0', 's_nop 0']
    for qt in range(2): red.append(f'v_permlane32_swap_b32 v{V_L+qt}, v{T+qt}')
    for qt in range(2): red.append(f'v_add_f32 v{V_L+qt}, v{V_L+qt}, v{T+qt}')
    for qt in range(2): red.append(f'v_max_f32 v{T+qt}, 0x0da24260, v{V_L+qt}')
    red += [f'v_rcp_f32 v{T+2}, v{T+1}', f'v_rcp_f32 v{T}, v{T}', 's_nop 0', f'v_mov_b32 v{T+3}, v{T+2}', f'v_mov_b32 v{T+1}, v{T}']
    for i in range(4): red.append(f's_mov_b32 s{S_ST+i}, {4096*i}')
    def norm(qt):
        o = []
        rc = vr(T + 1 + 2*qt - 1, 2) if False else None
        for T_ in range(4):
            b = O_(qt, T_)
            for i in range(0, 16, 2): o.append(f'v_pk_mul_f32 {vr(b+i, 2)}, {vr(b+i, 2)}, {vr(V_RC + 2*qt, 2)}')
            for i in range(8): o.append(f'v_cvt_pk_bf16_f32 v{b+i}, v{b+2*i}, v{b+2*i+1}')
            for tp in range(2):
                o.append(f'buffer_store_dwordx4 {vr(b + 4*tp, 4)}, v{T+4}, {sr(S_O, 4)}, s{S_ST+T_} offen offset:{(tp*2+qt)*1024}')
        return o
    V_RC = 28
    red += [f'v_mov_b64 {vr(V_RC, 2)}, {vr(T+1-1+0, 2)}' if False else f'v_mov_b32 v{V_RC}, v{T}', f'v_mov_b32 v{V_RC+1}, v{T}',
            f'v_mov_b32 v{V_RC+2}, v{T+2}', f'v_mov_b32 v{V_RC+3}, v{T+2}']
    pv = pv_mfmas(V_SB[1], vf=A_KF, by_qt=True)
    g = [[] for _ in range(16)]
    fill(g, red, 0, 8)
    n0 = norm(0)
    fill(g, n0[:36], 11, 16)
    seq += ['s_waitcnt lgkmcnt(0)', 's_nop 0'] + weave(pv, g) + n0[36:] + norm(1) + st()
    seq += st.dump(0x2000000, S_O)
    seq += ['L_attn_end:', 's_endpgm']
    P.seg(seq)

def gen_oproj(P, stamps=False):
    st = Stamps(stamps)
    S_OF, S_WO, S_OUT = 20, 24, 28
    S_RG, S_CG, S_OOFF, S_WOOFF, S_LB = 43, 44, 45, 46, 47
    T = 1
    V_OV, V_WV, V_WA2 = 8, 9, 12
    V_ACC = 32
    NB = 8
    V_OF = 96
    A_WF = 0
    RING = 16
    def acc(N, qt): return V_ACC + (N*2 + qt)*16
    pro = ['oproj_kernel:', 's_cmp_ge_u32 s2, 256', 's_cbranch_scc1 L_op_end',
           's_load_dwordx4 s[12:15], s[0:1], 32', 's_load_dwordx4 s[16:19], s[0:1], 48'] + st.start() + [
           f'v_lshrrev_b32 v{T}, 6, v0', 'v_and_b32 v0, 63, v0', f'v_readfirstlane_b32 s{S_W}, v{T}',
           f's_and_b32 s{S_B}, s2, 7', f's_lshr_b32 s{S_H}, s2, 3', f's_lshr_b32 s{S_RG}, s{S_H}, 3', f's_and_b32 s{S_CG}, s{S_H}, 7',
           f'v_lshlrev_b32 v{V_OV}, 4, v0',
           f'v_lshrrev_b32 v{T+1}, 3, v0', f'v_and_b32 v{T+2}, 7, v0', f'v_and_b32 v{T+3}, 16, v0', f'v_lshrrev_b32 v{T+3}, 2, v{T+3}',
           f'v_xor_b32 v{T+2}, v{T+2}, v{T+3}', f'v_lshlrev_b32 v{T+2}, 4, v{T+2}', f'v_lshl_add_u32 v{V_WV}, v{T+1}, 10, v{T+2}',
           f'v_add_u32 v{V_WV+1}, {8192-1024}, v{V_WV}',
           f'v_bfe_u32 v{T+1}, v0, 2, 2', f'v_lshrrev_b32 v{T+2}, 5, v0', f'v_lshl_add_u32 v{T+2}, v{T+2}, 2, v{T+1}',
           f'v_lshlrev_b32 v{T+2}, 7, v{T+2}', f'v_and_b32 v{T+3}, 8, v0', f'v_lshl_add_u32 v{T+2}, v{T+3}, 3, v{T+2}',
           f'v_and_b32 v{T+3}, 16, v0', f'v_lshl_add_u32 v{T+2}, v{T+3}, 1, v{T+2}',
           f'v_and_b32 v{T+3}, 3, v0', f'v_lshl_add_u32 v{T+2}, v{T+3}, 3, v{T+2}',
           f'v_lshl_add_u32 v{V_WA2}, v{T}, 15, v{T+2}', f'v_xor_b32 v{V_WA2+1}, 64, v{V_WA2}',
           f's_lshl_b32 s{S_LB}, s{S_W}, 15',
           's_waitcnt lgkmcnt(0)',
           f's_lshl_b32 s{S_T0}, s{S_B}, 2', f's_add_u32 s{S_T0}, s{S_T0}, s{S_RG}', f's_lshl_b32 s{S_T0}, s{S_T0}, 2',
           f's_add_u32 s{S_T0}, s{S_T0}, s{S_W}', f's_lshl_b32 s{S_T0}, s{S_T0}, 17',
           f's_add_u32 s4, s18, s{S_T0}', 's_addc_u32 s5, s19, 0'] + srd(S_OF, 4, 5, 131072)
    pro += [f's_lshl_b32 s{S_T0}, s{S_W}, 20', f's_lshl_b32 s{S_T1}, s{S_CG}, 7', f's_add_u32 s{S_T0}, s{S_T0}, s{S_T1}',
            f's_add_u32 s12, s12, s{S_T0}', 's_addc_u32 s13, s13, 0'] + srd(S_WO, 12, 13, 0) + [f's_sub_u32 s{S_WO+2}, 4194304, s{S_T0}']
    pro += [f's_mul_i32 s{S_T0}, s{S_B}, 245760', f's_add_u32 s14, s14, s{S_T0}', 's_addc_u32 s15, s15, 0'] + srd(S_OUT, 14, 15, 245760)
    pro += [f's_mov_b32 s{S_OOFF}, 0', f's_mov_b32 s{S_WOOFF}, 0']
    def issue(ks):
        slot = ks % RING; ob = V_OF + (ks % NB)*8
        tag = (f'w{slot}', f'w{ks}', True)
        return [f's_add_u32 m0, s{S_LB}, {slot*2048}',
                f'buffer_load_dwordx4 {vr(ob, 4)}, v{V_OV}, {sr(S_OF, 4)}, s{S_OOFF} offen',
                dma(V_WV, S_WO, S_WOOFF, 0, False, tag),
                f'buffer_load_dwordx4 {vr(ob+4, 4)}, v{V_OV}, {sr(S_OF, 4)}, s{S_OOFF} offen offset:1024',
                dma(V_WV + 1, S_WO, S_WOOFF, 1024, False, tag),
                f's_add_u32 s{S_OOFF}, s{S_OOFF}, 2048', f's_add_u32 s{S_WOOFF}, s{S_WOOFF}, 16384']
    def wreads(ks):
        slot = ks % RING; f = A_WF + (ks % 2)*8
        return [Ins(f'ds_read_b64_tr_b16 {ar(f + N*4 + u*2, 2)}, v{V_WA2+N} offset:{slot*2048 + 1024*u}', (f'w{slot}', f'w{ks}', True)) for N in range(2) for u in range(2)]
    for ks in range(NB - 1): pro += issue(ks)
    for r in range(V_ACC, V_ACC + 64, 2): pro.append(f'v_mov_b64 {vr(r, 2)}, 0')
    pro += [f's_mov_b32 s{S_CNT}, 4', f's_waitcnt vmcnt({(NB-2)*4})'] + st() + wreads(0)
    P.seg(pro)
    def step(ks):
        f = A_WF + (ks % 2)*8; ob = V_OF + (ks % NB)*8
        mf = [f'{MF} {vr(acc(N, qt), 16)}, {ar(f + N*4, 4)}, {vr(ob + qt*4, 4)}, {vr(acc(N, qt), 16)}' for N in range(2) for qt in range(2)]
        iss = issue(ks + NB - 1)
        g = [iss[:3], iss[3:], [f's_waitcnt vmcnt({(NB-2)*4})'] + wreads(ks + 1), []]
        return ['s_waitcnt lgkmcnt(0)'] + weave(mf, g)
    bodies = []
    for it in range(4):
        b = ['.p2align 3', 'L_op:'] + st()
        for k in range(RING): b += step(it*RING + k)
        b += [f's_sub_u32 s{S_CNT}, s{S_CNT}, 1', f's_cmp_lg_u32 s{S_CNT}, 0', 's_cbranch_scc1 L_op']
        bodies.append(b)
    P.loop(bodies)
    seq = ['s_waitcnt vmcnt(0) lgkmcnt(0)'] + st() + ['s_barrier',
           f'v_and_b32 v{T+1}, 31, v0', f'v_lshrrev_b32 v{T+2}, 5, v0', f'v_mul_u32_u24 v{T+1}, 272, v{T+1}',
           f'v_lshl_add_u32 v{T+1}, v{T+2}, 4, v{T+1}', f's_mul_i32 s{S_T0}, s{S_W}, 17408', f'v_add_u32 v{T+1}, s{S_T0}, v{T+1}', 's_nop 4']
    for N in range(2):
        for qt in range(2):
            for g in range(4):
                seq.append(f'ds_write_b128 v{T+1}, {vr(acc(N, qt) + 4*g, 4)} offset:{qt*32*272 + N*128 + g*32}')
    seq += [f'v_lshrrev_b32 v{T+2}, 3, v0', f's_lshl_b32 s{S_T0}, s{S_W}, 4', f'v_add_u32 v{T+2}, s{S_T0}, v{T+2}',
            f'v_and_b32 v{T+3}, 7, v0', f'v_mul_u32_u24 v{T+4}, 272, v{T+2}', f'v_lshl_add_u32 v{T+4}, v{T+3}, 5, v{T+4}',
            f's_lshl_b32 s{S_T0}, s{S_RG}, 6', f'v_add_u32 v{T+2}, s{S_T0}, v{T+2}', f'v_lshlrev_b32 v{T+2}, 10, v{T+2}',
            f'v_lshl_add_u32 v{T+2}, v{T+3}, 4, v{T+2}', f's_lshl_b32 s{S_T1}, s{S_CG}, 7', f's_add_u32 s{S_T0}, s{S_T1}, 8192',
            's_waitcnt lgkmcnt(0)', 's_barrier']
    for i in range(2):
        for p in range(4):
            for hlf in range(2):
                seq.append(f'ds_read_b128 {vr(V_OF + (i*8 + p*2 + hlf)*4, 4)}, v{T+4} offset:{p*17408 + i*8*272 + hlf*16}')
    for i in range(2):
        b = V_OF + i*32
        seq.append(f's_waitcnt lgkmcnt({8 if i == 0 else 0})')
        for j in range(0, 8, 2):
            seq += [f'v_pk_add_f32 {vr(b+j, 2)}, {vr(b+j, 2)}, {vr(b+8+j, 2)}', f'v_pk_add_f32 {vr(b+16+j, 2)}, {vr(b+16+j, 2)}, {vr(b+24+j, 2)}']
        for j in range(0, 8, 2): seq.append(f'v_pk_add_f32 {vr(b+j, 2)}, {vr(b+j, 2)}, {vr(b+16+j, 2)}')
        for j in range(4): seq.append(f'v_cvt_pk_bf16_f32 v{b+j}, v{b+2*j}, v{b+2*j+1}')
        seq.append(f'buffer_store_dwordx4 {vr(b, 4)}, v{T+2}, {sr(S_OUT, 4)}, s{S_T0 if i else S_T1} offen')
    seq += st.dump(0x2100000, S_OF)
    seq += ['L_op_end:', 's_endpgm']
    P.seg(seq)

HEADER = open('standalone__gqa_block_cached__near_ridge.s.ref').read().split('; Override')[0]

def kd(name, nv, accum, ns=102):
    return f'''.amdhsa_kernel {name}
  .amdhsa_next_free_vgpr {nv}
  .amdhsa_next_free_sgpr {ns}
  .amdhsa_accum_offset {accum}
  .amdhsa_group_segment_fixed_size 0
  .amdhsa_kernarg_size 64
  .amdhsa_user_sgpr_count 2
  .amdhsa_user_sgpr_kernarg_segment_ptr 1
  .amdhsa_system_sgpr_workgroup_id_x 1
.end_amdhsa_kernel
'''

def build(stamps=False):
    P1 = Prog(); st = gen_attn(P1, stamps); gen_attn_tail(P1, st)
    e1 = check(P1.trace[:], 'attn-slots')
    e1 = [e for e in e1 if 'LDS read of' not in e or "'st" in e]
    retag(P1)
    e2 = [e for e in check(P1.trace, 'attn')]
    P2 = Prog(); gen_oproj(P2, stamps)
    e3 = check(P2.trace, 'oproj')
    errs = sorted(set(e1 + e2)) + e3
    for e in errs[:40]: print('CHECK:', e, file=sys.stderr)
    txt = HEADER
    txt += '; @launch kernel=attn_kernel grid=(256,1,1) block=(256,1,1) lds=163840\n'
    txt += '; @launch kernel=oproj_kernel grid=(256,1,1) block=(256,1,1) lds=131072\n'
    txt += '.amdgcn_target "amdgcn-amd-amdhsa--gfx950"\n.text\n'
    for name, P in (('attn_kernel', P1), ('oproj_kernel', P2)):
        txt += f'.globl {name}\n.p2align 8\n.type {name},@function\n' + P.text()
    txt += '.section .rodata,"a"\n.p2align 6\n' + kd('attn_kernel', 432, 256) + '.p2align 6\n' + kd('oproj_kernel', 176, 160)
    return txt, errs

if __name__ == '__main__':
    stamps = '--stamps' in sys.argv
    for a in sys.argv:
        if a.startswith('--dbg='): DBGWG, DBGOFF = map(int, a[6:].split(','))
    out = [a for a in sys.argv[1:] if not a.startswith('--')]
    txt, errs = build(stamps)
    open(out[0] if out else 'standalone__gqa_block_cached__near_ridge.s', 'w').write(txt)
    print('errors:', len(errs))
```

```python
import struct, math, sys
from asmlib import *

def f2u(x): return struct.unpack('<I', struct.pack('<f', x))[0]
CSCALE = f2u(math.log2(math.e) / math.sqrt(128.0))
MF = 'v_mfma_f32_32x32x16_bf16'

def vr(b, n=1): return f'v{b}' if n == 1 else f'v[{b}:{b+n-1}]'
def ar(b, n=1): return f'a{b}' if n == 1 else f'a[{b}:{b+n-1}]'
def sr(b, n=1): return f's{b}' if n == 1 else f's[{b}:{b+n-1}]'

S_X, S_WQ, S_K, S_V, S_O = 20, 24, 28, 32, 36
S_B, S_H, S_W = 40, 41, 42
S_KC, S_XOFF, S_WOFF, S_M0X, S_DELTA, S_CNT, S_T0, S_T1 = 43, 44, 45, 46, 47, 48, 49, 50
S_KOFF, S_VOFF, S_M0K, S_POS, S_C = 51, 52, 53, 54, 56
S_W4K = 58
S_ST = 60
S_STAMP = 64
V_KA, V_VA, V_VK, V_VV, V_L = 8, 16, 20, 24, 26
V_T = 1
V_SB = [32, 64]
V_VX, V_VW, V_XA, V_WA = 32, 40, 44, 48
V_NEGM = 96
V_O = 128
A_Q, A_KF, A_VF, A_F = 0, 64, 96, [128, 152]
R = 5
SLOT = [16384, 65536, 114688]

def O_(qt, T): return V_O + (qt * 4 + T) * 16
def Q_(qt, t): return A_Q + (qt * 8 + t) * 4

V_STAMP = 25
DBGWG = None
DBGOFF = 0
class Stamps:
    def __init__(self, on): self.on = on; self.n = 0
    def __call__(self, first=False):
        if not self.on: return []
        pre = [f's_mov_b32 s{S_STAMP+2}, 0'] if first else []
        return pre + [f's_memtime {sr(S_STAMP, 2)}', f's_mov_b32 m0, s{S_STAMP+2}', 's_waitcnt lgkmcnt(0)', f'v_writelane_b32 v{V_STAMP}, s{S_STAMP}, m0',
                      f's_add_u32 s{S_STAMP+2}, s{S_STAMP+2}, 1']
    def dump(self, base, srdreg):
        if not self.on: return []
        return ['s_waitcnt vmcnt(0)'] + self() + [f's_memrealtime {sr(S_STAMP, 2)}', 's_waitcnt lgkmcnt(0)', f'v_writelane_b32 v{V_STAMP}, s{S_STAMP}, 63',
                f'v_writelane_b32 v{V_STAMP}, s{S_STAMP+4}, 62', f'v_writelane_b32 v{V_STAMP}, s{S_STAMP+2}, 61',
                f's_lshl_b32 s{S_T0}, s2, 2', f's_add_u32 s{S_T0}, s{S_T0}, s{S_W}', f's_lshl_b32 s{S_T0}, s{S_T0}, 8',
                f's_add_u32 s{S_T0}, s{S_T0}, {base:#x}', f's_add_u32 s12, s18, s{S_T0}', 's_addc_u32 s13, s19, 0'] + srd(srdreg, 12, 13, 256) + [
                'v_lshlrev_b32 v4, 2, v0', f'buffer_store_dword v{V_STAMP}, v4, {sr(srdreg, 4)}, 0 offen'] + self.dbg(srdreg)
    def dbg(self, srdreg):
        if DBGWG is None: return []
        return [f's_lshl_b32 s{S_T0}, s2, 2', f's_add_u32 s{S_T0}, s{S_T0}, s{S_W}', f's_cmp_eq_u32 s{S_T0}, {DBGWG*4}', f's_cselect_b32 s{S_T1}, 64, 0',
                f's_mov_b32 s{srdreg}, s16', f's_mov_b32 s{srdreg+1}, s17', f's_mov_b32 s{srdreg+2}, s{S_T1}',
                f'v_readlane_b32 s{S_T0}, v{V_STAMP}, 0', f's_sub_u32 s{S_T1}, s{S_STAMP}, s{S_STAMP+4}', 's_nop 1',
                f'v_subrev_u32 v5, s{S_T0}, v{V_STAMP}', f'v_writelane_b32 v5, s{S_T1}, {DBGOFF}', f'v_subrev_u32 v4, {DBGOFF*4}, v4', 's_nop 1',
                f'buffer_store_dword v5, v4, {sr(srdreg, 4)}, 0 offen']
    def start(self):
        if not self.on: return []
        return [f's_memrealtime {sr(S_STAMP+4, 2)}'] + self(True)

def srd(d, lo, hi, size):
    return [f's_mov_b32 s{d}, s{lo}', f's_mov_b32 s{d+1}, s{hi}', f's_mov_b32 s{d+2}, {size}', f's_mov_b32 s{d+3}, 0x00020000']

def dma(voff, srdreg, soff, imm, nt, tag):
    return Ins(f'buffer_load_dwordx4 v{voff}, {sr(srdreg, 4)}, s{soff} offen offset:{imm}{" nt" if nt else ""} lds', tag)

def spread(n, items, start=0, end=None):
    end = n if end is None else end
    g = [[] for _ in range(n)]
    for i, it in enumerate(items):
        g[start + i * (end - start) // len(items)] += it
    return g

def merge(*gs):
    return [sum((g[i] for g in gs), []) for i in range(len(gs[0]))]

COST = {'v_exp_f32': 8}
def cost(ins):
    t = ins.text if isinstance(ins, Ins) else ins
    mn = t.split()[0]
    if mn == 'v_exp_f32': return 8
    if mn.startswith('buffer_load'): return 24
    return 4

def fill(gaps, seq, start, end):
    base = [sum(cost(x) for x in g) for g in gaps]
    tot = sum(base[start:end]) + sum(cost(x) for x in seq)
    n = end - start
    k = 0; acc = 0
    for gi in range(start, end):
        acc += base[gi]
        target = tot * (gi - start + 1) / n
        while k < len(seq) and (acc + cost(seq[k]) / 2 <= target or gi == end - 1):
            gaps[gi].append(seq[k]); acc += cost(seq[k]); k += 1
    return gaps

def q_reads(s, k, F):
    slot = (s + 1) % 3
    out = []
    for T in range(4):
        for u in range(2):
            out.append(Ins(f'ds_read_b64_tr_b16 {ar(F + T*4 + u*2, 2)}, v{V_WA+T} offset:{4096*k + 1024*u}', (f'qs{slot}', f'st{s}', False)))
    for qt in range(2):
        out.append(Ins(f'ds_read_b128 {ar(F + 16 + qt*4, 4)}, v{V_XA+k} offset:{4096*qt}', (f'qs{slot}', f'st{s}', False)))
    return out

def q_mfmas(F):
    return [f'{MF} {vr(O_(qt, T), 16)}, {ar(F + T*4, 4)}, {ar(F + 16 + qt*4, 4)}, {vr(O_(qt, T), 16)}' for T in range(4) for qt in range(2)]

def q_dma_groups(s):
    slot = (s + 1) % 3
    tag = (f'qs{slot}', f'st{s}', False)
    ga = [[f's_mov_b32 m0, s{S_M0X}', 's_nop 0', dma(V_VX + 0, S_X, S_XOFF, 0, False, tag)]] + [[dma(V_VX + i, S_X, S_XOFF, 1024*i, False, tag)] for i in range(1, 4)]
    gb = [[f's_add_u32 m0, s{S_M0X}, 4096', 's_nop 0', dma(V_VX + 4, S_X, S_XOFF, 0, False, tag)]] + [[dma(V_VX + 4 + i, S_X, S_XOFF, 1024*i, False, tag)] for i in range(1, 4)]
    gc = [[f's_sub_u32 s{S_T0}, s{S_M0X}, s{S_W4K}', f's_add_u32 m0, s{S_T0}, 32768', 's_nop 0', dma(V_VW + 0, S_WQ, S_WOFF, 0, False, tag)]] + [[dma(V_VW + i, S_WQ, S_WOFF, 1024*i, False, tag)] for i in range(1, 4)]
    return ga, gb, gc

def q_dma_advance():
    return [f's_add_u32 s{S_KC}, s{S_KC}, 1', f's_and_b32 s{S_KC}, s{S_KC}, 7',
            f's_lshl_b32 s{S_XOFF}, s{S_KC}, 7', f's_lshl_b32 s{S_WOFF}, s{S_KC}, 19',
            f's_add_u32 s{S_M0X}, s{S_M0X}, 49152', f's_cmp_ge_u32 s{S_M0X}, 163840',
            f's_cselect_b32 s{S_T0}, 147456, 0', f's_sub_u32 s{S_M0X}, s{S_M0X}, s{S_T0}']

def kv_regions(kind, u):
    return f'{kind}{u % R}'

def kv_dma_fixed(kind, u, alias=None):
    pos = (u % R) * 32768 + (16384 if kind == 'V' else 0)
    tag = (alias or kv_regions(kind, u), f'{kind}{u}', False)
    if kind == 'K':
        pre = [f's_add_u32 s{S_T1}, s{S_W4K}, {u*16384}', f's_add_u32 m0, s{S_W4K}, {pos}', 's_nop 0']
        return [pre + [dma(V_VK, S_K, S_T1, 0, True, tag)]] + [[dma(V_VK + i, S_K, S_T1, 1024*i, True, tag)] for i in range(1, 4)]
    if u == 0:
        pre = [f's_and_b32 s{S_T1}, s{S_W4K}, 4096', f's_add_u32 m0, s{S_W4K}, {pos}', 's_nop 0']
    else:
        pre = [f's_add_u32 s{S_T1}, s{S_W4K}, {u*16384 - 8192}', f's_add_u32 m0, s{S_W4K}, {pos}', 's_nop 0']
    return [pre + [dma(V_VV, S_V, S_T1, 0, True, tag)]] + [[dma(V_VV, S_V, S_T1, 1024*i, True, tag)] for i in range(1, 4)]

def q_group(F, reads, dmag):
    g = spread(8, [[r] for r in reads], 0, 5)
    if dmag: g = merge(g, spread(8, dmag, 4, 8))
    return ['s_waitcnt lgkmcnt(0)'] + weave(q_mfmas(F), g)

def q_addr_advance():
    out = [f's_add_u32 s{S_POS}, s{S_POS}, 49152', f's_cmp_ge_u32 s{S_POS}, 163840',
           f's_cselect_b32 s{S_T0}, 147456, 0', f's_sub_u32 s{S_DELTA}, 49152, s{S_T0}', f's_sub_u32 s{S_POS}, s{S_POS}, s{S_T0}']
    out += [f'v_add_u32 v{V_XA+i}, s{S_DELTA}, v{V_XA+i}' for i in range(4)]
    out += [f'v_add_u32 v{V_WA+i}, s{S_DELTA}, v{V_WA+i}' for i in range(4)]
    return out

def k_reads(u, half, dst=A_KF, region=None):
    return [Ins(f'ds_read_b128 {ar(dst + 4*t, 4)}, v{V_KA+t} offset:{8192*half}', (region or kv_regions('K', u), f'K{u}', False)) for t in range(8)]

def v_reads(u, half, dst=A_VF, region=None):
    out = []
    for tp in range(2):
        for T in range(4):
            for uu in range(2):
                out.append(Ins(f'ds_read_b64_tr_b16 {ar(dst + (tp*4+T)*4 + uu*2, 2)}, v{V_VA+T} offset:{8192*half + 4096*tp + 2048*uu}', (region or kv_regions('V', u), f'V{u}', False)))
    return out

def qk_mfmas(sb, first_c):
    out = []
    for t in range(8):
        for qt in range(2):
            d = vr(sb + 16*qt, 16)
            c = d if t else first_c(qt)
            out.append(f'{MF} {d}, {ar(A_KF + 4*t, 4)}, {ar(Q_(qt, t), 4)}, {c}')
    return out

def pv_mfmas(sb, vf=A_VF, by_qt=False):
    order = [(tp, T, qt) for tp in range(2) for T in range(4) for qt in range(2)]
    if by_qt: order = [(tp, T, qt) for qt in range(2) for tp in range(2) for T in range(4)]
    return [f'{MF} {vr(O_(qt, T), 16)}, {ar(vf + (tp*4+T)*4, 4)}, {vr(sb + 16*qt + 8*tp, 4)}, {vr(O_(qt, T), 16)}' for tp, T, qt in order]

def sm_seq(sb):
    regs = [(qt, sb + 16*qt + 8*tp + i, sb + 16*qt + 8*tp) for tp in range(2) for qt in range(2) for i in range(8)]
    out = []
    def post(k):
        qt, r, base = regs[k]
        o = [f'v_add_f32 v{V_L+qt}, v{V_L+qt}, v{r}']
        if (r - base) & 1:
            o.append(f'v_cvt_pk_bf16_f32 v{base + (r - base)//2}, v{r-1}, v{r}')
        return o
    for k in range(32):
        out.append(f'v_exp_f32 v{regs[k][1]}, v{regs[k][1]}')
        if k: out += post(k - 1)
    out += ['s_nop 0'] + post(31)
    return out

def kv_addr_advance():
    out = [f's_add_u32 s{S_POS}, s{S_POS}, 32768', f's_cmp_ge_u32 s{S_POS}, {R*32768}',
           f's_cselect_b32 s{S_T0}, {R*32768}, 0', f's_sub_u32 s{S_DELTA}, 32768, s{S_T0}', f's_sub_u32 s{S_POS}, s{S_POS}, s{S_T0}']
    out += [f'v_add_u32 v{V_KA+i}, s{S_DELTA}, v{V_KA+i}' for i in range(8)]
    out += [f'v_add_u32 v{V_VA+i}, s{S_DELTA}, v{V_VA+i}' for i in range(4)]
    return out

def negm_c(qt): return vr(V_NEGM + 16*qt, 16)

def attn_iter(it):
    u = it + 1
    ktag = (kv_regions('K', it + R), f'K{it+R}', False)
    vtag = (kv_regions('V', it + R), f'V{it+R}', False)
    kd = [[f's_mov_b32 m0, s{S_M0K}', 's_nop 0', dma(V_VK, S_K, S_KOFF, 0, True, ktag)]] + [[dma(V_VK + i, S_K, S_KOFF, 1024*i, True, ktag)] for i in range(1, 4)]
    vd = [[f's_add_u32 m0, s{S_M0K}, 16384', 's_nop 0', dma(V_VV, S_V, S_VOFF, 0, True, vtag)]] + [[dma(V_VV, S_V, S_VOFF, 1024*i, True, vtag)] for i in range(1, 4)]
    adv = [f's_add_u32 s{S_KOFF}, s{S_KOFF}, 16384', f's_add_u32 s{S_VOFF}, s{S_VOFF}, 16384',
           f's_add_u32 s{S_M0K}, s{S_M0K}, 32768', f's_cmp_ge_u32 s{S_M0K}, {R*32768}',
           f's_cselect_b32 s{S_T0}, {R*32768}, 0', f's_sub_u32 s{S_M0K}, s{S_M0K}, s{S_T0}']
    out = []
    for half in range(2):
        psb = V_SB[half]
        csb = V_SB[1 - half]
        mf = pv_mfmas(psb) + qk_mfmas(psb, negm_c)
        g = spread(32, [[r] for r in k_reads(u, half)], 0, 3)
        g = merge(g, spread(32, [[r] for r in v_reads(u, half)], 16, 28))
        g[15].append('s_waitcnt lgkmcnt(0)')
        if half == 0:
            g = merge(g, spread(32, kd + vd, 3, 27))
        else:
            g = merge(g, spread(32, [[a] for a in adv], 3, 15))
            g[31] += kv_addr_advance()
        fill(g, sm_seq(csb), 3, 31)
        if half == 0:
            g[31].append('s_waitcnt lgkmcnt(0)')
        out += weave(mf, g)
    out += [f's_sub_u32 s{S_CNT}, s{S_CNT}, 1', f's_cmp_lg_u32 s{S_CNT}, 0',
            f's_waitcnt vmcnt({(R-2)*8}) lgkmcnt(0)', 's_barrier', 's_cbranch_scc1 L_att']
    return out

def gen_attn(P, stamps=False):
    st = Stamps(stamps)
    T = V_T
    pro = ['attn_kernel:', 's_cmp_ge_u32 s2, 256', 's_cbranch_scc1 L_attn_end'] + st.start() + [
           's_load_dwordx8 s[4:11], s[0:1], 0', 's_load_dwordx4 s[16:19], s[0:1], 48',
           f'v_lshrrev_b32 v{T}, 6, v0', 'v_and_b32 v0, 63, v0', f'v_readfirstlane_b32 s{S_W}, v{T}',
           f's_and_b32 s{S_B}, s2, 7', f's_lshr_b32 s{S_H}, s2, 3', f's_lshl_b32 s{S_W4K}, s{S_W}, 12',
           f'v_lshrrev_b32 v{T+1}, 3, v0', f'v_and_b32 v{T+2}, 7, v0', f'v_lshrrev_b32 v{T+3}, 4, v0',
           f'v_xor_b32 v{T+2}, v{T+2}, v{T+3}', f'v_lshlrev_b32 v{T+2}, 4, v{T+2}',
           f'v_lshl_add_u32 v{T+2}, v{T+1}, 10, v{T+2}', f'v_lshl_add_u32 v{V_VX}, v{T}, 16, v{T+2}',
           f'v_xor_b32 v{T+2}, 64, v{V_VX}']
    for i in range(1, 8):
        src = T + 2 if i & 1 else V_VX
        pro.append(f'v_add_u32 v{V_VX+i}, {(8*i - i % 4)*1024}, v{src}')
    pro += [f'v_and_b32 v{T+4}, 15, v0', f'v_lshlrev_b32 v{T+5}, 2, v{T+3}', f'v_xor_b32 v{T+5}, v{T+4}, v{T+5}',
            f'v_lshlrev_b32 v{T+5}, 4, v{T+5}',
            f'v_lshl_add_u32 v{V_VV}, v{T+3}, 8, v{T+5}',
            f'v_lshl_add_u32 v{T+6}, v{T}, 4, v{T+3}',
            f'v_lshl_add_u32 v{V_VW}, v{T+6}, 13, v{T+5}']
    for i in range(1, 4): pro.append(f'v_add_u32 v{V_VW+i}, {i*(32768-1024)}, v{V_VW}')
    pro += [f'v_xor_b32 v{T+4}, v{T+4}, v{T+3}', f'v_lshlrev_b32 v{T+4}, 4, v{T+4}', f'v_lshl_add_u32 v{V_VK}, v{T+3}, 8, v{T+4}']
    for i in range(1, 4): pro.append(f'v_xor_b32 v{V_VK+i}, {i << 6}, v{V_VK}')
    pro += ['s_waitcnt lgkmcnt(0)',
            f's_mul_i32 s{S_T0}, s{S_B}, 245760', f's_add_u32 s4, s4, s{S_T0}', 's_addc_u32 s5, s5, 0'] + srd(S_X, 4, 5, 245760)
    pro += [f's_lshl_b32 s{S_T0}, s{S_H}, 8', f's_add_u32 s10, s10, s{S_T0}', 's_addc_u32 s11, s11, 0'] + srd(S_WQ, 10, 11, 0)
    pro += [f's_sub_u32 s{S_WQ+2}, 4194304, s{S_T0}',
            f's_lshl_b32 s{S_T0}, s{S_B}, 5', f's_add_u32 s{S_T0}, s{S_T0}, s{S_H}', f's_lshl_b32 s{S_T0}, s{S_T0}, 17',
            f's_add_u32 s6, s6, s{S_T0}', 's_addc_u32 s7, s7, 0', f's_add_u32 s8, s8, s{S_T0}', 's_addc_u32 s9, s9, 0']
    pro += srd(S_K, 6, 7, 131072) + srd(S_V, 8, 9, 131072)
    pro += [f's_add_u32 s{S_KC}, s{S_B}, s{S_H}', f's_and_b32 s{S_KC}, s{S_KC}, 7', f's_lshl_b32 s{S_XOFF}, s{S_KC}, 7', f's_lshl_b32 s{S_WOFF}, s{S_KC}, 19',
            f's_lshl_b32 s{S_M0X}, s{S_W}, 13', f's_add_u32 s{S_M0X}, s{S_M0X}, {SLOT[1]}']
    flat = lambda gs: [i for g in gs for it in g for i in it]
    pro += st() + flat(q_dma_groups(0)) + q_dma_advance() + st()
    pro += flat([kv_dma_fixed('K', 0)])
    pro += flat(q_dma_groups(1)) + q_dma_advance() + st()
    pro += [f'v_and_b32 v{T+1}, 31, v0', f'v_lshrrev_b32 v{T+2}, 5, v0',
            f'v_bfe_u32 v{T+3}, v0, 1, 3', f'v_xor_b32 v{T+3}, v{T+3}, v{T+2}', f'v_lshlrev_b32 v{T+3}, 4, v{T+3}',
            f'v_lshl_add_u32 v{T+3}, v{T+1}, 7, v{T+3}', f'v_lshl_add_u32 v{T+3}, v{T}, 13, v{T+3}']
    for s in range(4): pro += [f'v_xor_b32 v{V_XA+s}, {s << 5}, v{T+3}', f'v_add_u32 v{V_XA+s}, {SLOT[1]}, v{V_XA+s}']
    pro += [f'v_and_b32 v{T+3}, 15, v0', f'v_xor_b32 v{T+3}, v{T+3}, v{T+2}', f'v_lshlrev_b32 v{T+3}, 4, v{T+3}',
            f'v_lshl_add_u32 v{V_KA}, v{T+1}, 8, v{T+3}']
    for t in range(1, 8): pro.append(f'v_xor_b32 v{V_KA+t}, {t << 5}, v{V_KA}')
    pro += [f'v_bfe_u32 v{T+3}, v0, 2, 2',
            f'v_mul_u32_u24 v{T+4}, 320, v{T+3}',
            f'v_and_b32 v{T+5}, 16, v0', f'v_lshl_add_u32 v{T+4}, v{T+5}, 1, v{T+4}',
            f'v_and_b32 v{T+5}, 3, v0', f'v_lshl_add_u32 v{T+6}, v{T+5}, 3, v{T+4}',
            f'v_lshl_add_u32 v{T+6}, v{T+2}, 10, v{T+6}']
    for i in range(4): pro += [f'v_xor_b32 v{V_VA+i}, {i << 6}, v{T+6}', f'v_add_u32 v{V_VA+i}, 16384, v{V_VA+i}']
    pro += [f'v_and_b32 v{T+5}, 1, v0', f'v_lshl_add_u32 v{T+4}, v{T+5}, 4, v{T+4}',
            f'v_and_b32 v{T+5}, 2, v0', f'v_lshl_add_u32 v{T+4}, v{T+5}, 2, v{T+4}',
            f'v_lshl_add_u32 v{T+4}, v{T+2}, 11, v{T+4}']
    for i in range(4): pro += [f'v_xor_b32 v{V_WA+i}, {i << 6}, v{T+4}', f'v_add_u32 v{V_WA+i}, {SLOT[1] + 32768}, v{V_WA+i}']
    for r in range(V_O, V_O + 128, 2): pro.append(f'v_mov_b64 {vr(r, 2)}, 0')
    pro += [f's_mov_b32 s{S_POS}, {SLOT[1]}', f's_mov_b32 s{S_CNT}, 6', f's_mov_b32 s{S_C}, {CSCALE:#x}', f's_mov_b32 s{S_C+1}, {CSCALE:#x}']
    pro += [f's_lshl_b32 s{S_T0}, s{S_B}, 2', f's_add_u32 s{S_T0}, s{S_T0}, s{S_W}', f's_lshl_b32 s{S_T0}, s{S_T0}, 5',
            f's_add_u32 s{S_T0}, s{S_T0}, s{S_H}', f's_lshl_b32 s{S_T0}, s{S_T0}, 14',
            f's_add_u32 s12, s18, s{S_T0}', 's_addc_u32 s13, s19, 0'] + srd(S_O, 12, 13, 16384)
    pro += st() + ['s_waitcnt vmcnt(16)'] + st() + ['s_barrier'] + st() + q_reads(0, 0, A_F[0]) + ['s_branch L_q_mid']
    P.seg(pro)

    def q_body(s, dmag, last_wait, loop):
        g1 = q_group(A_F[1], q_reads(s, 0, A_F[0]), None)
        rest = q_group(A_F[0], q_reads(s, 1, A_F[1]), dmag[0]) + q_group(A_F[1], q_reads(s, 2, A_F[0]), dmag[1]) \
             + q_group(A_F[0], q_reads(s, 3, A_F[1]), dmag[2])
        tail = q_addr_advance()
        if loop:
            tail += q_dma_advance() + [f's_sub_u32 s{S_CNT}, s{S_CNT}, 1', f's_cmp_lg_u32 s{S_CNT}, 0']
        tail += [f's_waitcnt vmcnt({last_wait}) lgkmcnt(0)', 's_barrier']
        if loop: tail += ['s_cbranch_scc1 L_q']
        return g1, rest + tail
    g1, rest = q_body(0, q_dma_groups(2), 12, True)
    P.seg(rest, code=False)
    bodies = []
    for s in range(1, 6):
        g1, rest = q_body(s, q_dma_groups(s + 2), 12, True)
        bodies.append(['.p2align 3', 'L_q:'] + st() + g1 + ['L_q_mid:'] + rest)
    P.loop(bodies)
    g1, rest = q_body(6, [kv_dma_fixed('V', 0, 'qs0'), kv_dma_fixed('K', 1, 'qs0'), kv_dma_fixed('V', 1, 'qs0')], 12, False)
    P.seg(st() + g1 + rest)
    g1, rest = q_body(7, [kv_dma_fixed('K', 2, 'qs1'), kv_dma_fixed('V', 2, 'qs1'), kv_dma_fixed('K', 3, 'qs1')], 20, False)
    P.seg(st() + g1 + rest + st())
    dm = kv_dma_fixed('V', 3, 'qs2') + kv_dma_fixed('K', 4, 'qs2') + kv_dma_fixed('V', 4, 'qs2')
    g = merge(spread(8, [[r] for r in k_reads(0, 0)], 0, 4), spread(8, dm[:8], 0, 8))
    P.seg(weave(q_mfmas(A_F[1]), g) + [i for it in dm[8:] for i in it] + st())
    conv = []
    qk0 = qk_mfmas(V_SB[0], lambda qt: '0')
    for T_ in range(4):
        for qt in range(2):
            b = O_(qt, T_)
            for i in range(0, 16, 2): conv.append(f'v_pk_mul_f32 {vr(b+i, 2)}, {vr(b+i, 2)}, {sr(S_C, 2)}')
            for i in range(8): conv.append(f'v_cvt_pk_bf16_f32 v{b+i}, v{b+2*i}, v{b+2*i+1}')
            for i in range(8): conv.append(f'v_accvgpr_write_b32 a{Q_(qt, 2*T_) + i}, v{b+i}')
            for i in range(0, 16, 2): conv.append(f'v_mov_b64 {vr(b+i, 2)}, 0')
    seq = ['s_nop 4', 's_waitcnt lgkmcnt(0)'] + conv[:64]
    for T_ in range(4):
        nxt = conv[64*(T_+1):64*(T_+2)]
        g = [nxt[16*i:16*(i+1)] for i in range(4)]
        seq += weave(qk0[4*T_:4*T_+4], g)
    seq += k_reads(0, 1) + ['s_nop 3']
    sb = V_SB[0]
    for qt in range(2):
        b = sb + 16*qt; m = T + 2*qt
        seq.append(f'v_max3_f32 v{m}, v{b}, v{b+1}, v{b+2}')
        for i in range(3, 15, 2): seq.append(f'v_max3_f32 v{m}, v{m}, v{b+i}, v{b+i+1}')
        seq += [f'v_max_f32 v{m}, v{m}, v{b+15}', f'v_mov_b32 v{m+1}, v{m}']
    seq += [f'v_and_b32 v{T+4}, 31, v0', f's_lshl_b32 s{S_T0}, s{S_W}, 6', f'v_add_u32 v{T+4}, s{S_T0}, v{T+4}',
            f'v_permlane32_swap_b32 v{T}, v{T+1}', f'v_permlane32_swap_b32 v{T+2}, v{T+3}',
            f'v_cmp_lt_u32 vcc, 207, v{T+4}', f'v_mov_b32 v{T+5}, 0xff800000',
            f'v_max_f32 v{T}, v{T}, v{T+1}', f'v_max_f32 v{T+2}, v{T+2}, v{T+3}',
            f'v_sub_f32 v{V_NEGM}, 0, v{T}', f'v_sub_f32 v{T+2}, 0, v{T+2}',
            f'v_cndmask_b32 v{V_NEGM+16}, v{T+2}, v{T+5}, vcc',
            f'v_mov_b32 v{V_NEGM+1}, v{V_NEGM}', f'v_mov_b32 v{V_NEGM+17}, v{V_NEGM+16}']
    for qt in range(2):
        for i in range(2, 16, 2): seq.append(f'v_mov_b64 {vr(V_NEGM+16*qt+i, 2)}, {vr(V_NEGM+16*qt, 2)}')
    seq += [f'v_mov_b64 {vr(V_L, 2)}, 0', 's_waitcnt lgkmcnt(0)']
    sub = [f'v_pk_add_f32 {vr(sb+16*qt+8*tp+i, 2)}, {vr(sb+16*qt+8*tp+i, 2)}, {vr(V_NEGM+16*qt, 2)}' for tp in range(2) for qt in range(2) for i in range(0, 8, 2)]
    g = spread(16, [[r] for r in v_reads(0, 1, region='qs0')], 0, 12)
    g[15] += kv_addr_advance()
    fill(g, sub + sm_seq(sb), 0, 15)
    seq += [f's_mov_b32 s{S_POS}, 0'] + weave(qk_mfmas(V_SB[1], negm_c), g)
    seq += [f's_mov_b32 s{S_CNT}, 7', f's_add_u32 s{S_KOFF}, s{S_W4K}, {R*16384}', f's_add_u32 s{S_VOFF}, s{S_W4K}, {R*16384 - 8192}',
            f's_mov_b32 s{S_M0K}, s{S_W4K}', f's_waitcnt vmcnt({(R-2)*8}) lgkmcnt(0)', 's_barrier']
    P.seg(seq)
    return st

def retag(P):
    for ins in P.trace:
        if ins.tag and ins.tag[1][0] in 'KV':
            ins.tag = (kv_regions(ins.tag[1][0], int(ins.tag[1][1:])), ins.tag[1], ins.tag[2])

def gen_attn_tail(P, st):
    T = V_T
    P.loop([['.p2align 3', 'L_att:'] + st() + attn_iter(it) for it in range(7)])
    g = spread(16, [[r] for r in v_reads(8, 0, dst=A_KF)], 0, 8)
    fill(g, sm_seq(V_SB[1]), 1, 16)
    seq = st() + weave(pv_mfmas(V_SB[0]), g)
    red = []
    for qt in range(2): red.append(f'v_mov_b32 v{T+qt}, v{V_L+qt}')
    red += [f'v_lshlrev_b32 v{T+4}, 4, v0', 's_nop 0']
    for qt in range(2): red.append(f'v_permlane32_swap_b32 v{V_L+qt}, v{T+qt}')
    for qt in range(2): red.append(f'v_add_f32 v{V_L+qt}, v{V_L+qt}, v{T+qt}')
    for qt in range(2): red.append(f'v_max_f32 v{T+qt}, 0x0da24260, v{V_L+qt}')
    red += [f'v_rcp_f32 v{T+2}, v{T+1}', f'v_rcp_f32 v{T}, v{T}', 's_nop 0', f'v_mov_b32 v{T+3}, v{T+2}', f'v_mov_b32 v{T+1}, v{T}']
    for i in range(4): red.append(f's_mov_b32 s{S_ST+i}, {4096*i}')
    def norm(qt):
        o = []
        rc = vr(T + 1 + 2*qt - 1, 2) if False else None
        for T_ in range(4):
            b = O_(qt, T_)
            for i in range(0, 16, 2): o.append(f'v_pk_mul_f32 {vr(b+i, 2)}, {vr(b+i, 2)}, {vr(V_RC + 2*qt, 2)}')
            for i in range(8): o.append(f'v_cvt_pk_bf16_f32 v{b+i}, v{b+2*i}, v{b+2*i+1}')
            for tp in range(2):
                o.append(f'buffer_store_dwordx4 {vr(b + 4*tp, 4)}, v{T+4}, {sr(S_O, 4)}, s{S_ST+T_} offen offset:{(tp*2+qt)*1024}')
        return o
    V_RC = 28
    red += [f'v_mov_b64 {vr(V_RC, 2)}, {vr(T+1-1+0, 2)}' if False else f'v_mov_b32 v{V_RC}, v{T}', f'v_mov_b32 v{V_RC+1}, v{T}',
            f'v_mov_b32 v{V_RC+2}, v{T+2}', f'v_mov_b32 v{V_RC+3}, v{T+2}']
    pv = pv_mfmas(V_SB[1], vf=A_KF, by_qt=True)
    g = [[] for _ in range(16)]
    fill(g, red, 0, 8)
    n0 = norm(0)
    fill(g, n0[:36], 11, 16)
    seq += ['s_waitcnt lgkmcnt(0)', 's_nop 0'] + weave(pv, g) + n0[36:] + norm(1) + st()
    seq += st.dump(0x2000000, S_O)
    seq += ['L_attn_end:', 's_endpgm']
    P.seg(seq)

def gen_oproj(P, stamps=False):
    st = Stamps(stamps)
    S_OF, S_WO, S_OUT = 20, 24, 28
    S_RG, S_CG, S_OOFF, S_WOOFF, S_LB = 43, 44, 45, 46, 47
    T = 1
    V_OV, V_WV, V_WA2 = 8, 9, 12
    V_ACC = 32
    NB = 8
    V_OF = 96
    A_WF = 0
    RING = 16
    def acc(N, qt): return V_ACC + (N*2 + qt)*16
    pro = ['oproj_kernel:', 's_cmp_ge_u32 s2, 256', 's_cbranch_scc1 L_op_end',
           's_load_dwordx4 s[12:15], s[0:1], 32', 's_load_dwordx4 s[16:19], s[0:1], 48'] + st.start() + [
           f'v_lshrrev_b32 v{T}, 6, v0', 'v_and_b32 v0, 63, v0', f'v_readfirstlane_b32 s{S_W}, v{T}',
           f's_and_b32 s{S_B}, s2, 7', f's_lshr_b32 s{S_H}, s2, 3', f's_lshr_b32 s{S_RG}, s{S_H}, 3', f's_and_b32 s{S_CG}, s{S_H}, 7',
           f'v_lshlrev_b32 v{V_OV}, 4, v0',
           f'v_lshrrev_b32 v{T+1}, 3, v0', f'v_and_b32 v{T+2}, 7, v0', f'v_and_b32 v{T+3}, 16, v0', f'v_lshrrev_b32 v{T+3}, 2, v{T+3}',
           f'v_xor_b32 v{T+2}, v{T+2}, v{T+3}', f'v_lshlrev_b32 v{T+2}, 4, v{T+2}', f'v_lshl_add_u32 v{V_WV}, v{T+1}, 10, v{T+2}',
           f'v_add_u32 v{V_WV+1}, {8192-1024}, v{V_WV}',
           f'v_bfe_u32 v{T+1}, v0, 2, 2', f'v_lshrrev_b32 v{T+2}, 5, v0', f'v_lshl_add_u32 v{T+2}, v{T+2}, 2, v{T+1}',
           f'v_lshlrev_b32 v{T+2}, 7, v{T+2}', f'v_and_b32 v{T+3}, 8, v0', f'v_lshl_add_u32 v{T+2}, v{T+3}, 3, v{T+2}',
           f'v_and_b32 v{T+3}, 16, v0', f'v_lshl_add_u32 v{T+2}, v{T+3}, 1, v{T+2}',
           f'v_and_b32 v{T+3}, 3, v0', f'v_lshl_add_u32 v{T+2}, v{T+3}, 3, v{T+2}',
           f'v_lshl_add_u32 v{V_WA2}, v{T}, 15, v{T+2}', f'v_xor_b32 v{V_WA2+1}, 64, v{V_WA2}',
           f's_lshl_b32 s{S_LB}, s{S_W}, 15',
           's_waitcnt lgkmcnt(0)',
           f's_lshl_b32 s{S_T0}, s{S_B}, 2', f's_add_u32 s{S_T0}, s{S_T0}, s{S_RG}', f's_lshl_b32 s{S_T0}, s{S_T0}, 2',
           f's_add_u32 s{S_T0}, s{S_T0}, s{S_W}', f's_lshl_b32 s{S_T0}, s{S_T0}, 17',
           f's_add_u32 s4, s18, s{S_T0}', 's_addc_u32 s5, s19, 0'] + srd(S_OF, 4, 5, 131072)
    pro += [f's_lshl_b32 s{S_T0}, s{S_W}, 20', f's_lshl_b32 s{S_T1}, s{S_CG}, 7', f's_add_u32 s{S_T0}, s{S_T0}, s{S_T1}',
            f's_add_u32 s12, s12, s{S_T0}', 's_addc_u32 s13, s13, 0'] + srd(S_WO, 12, 13, 0) + [f's_sub_u32 s{S_WO+2}, 4194304, s{S_T0}']
    pro += [f's_mul_i32 s{S_T0}, s{S_B}, 245760', f's_add_u32 s14, s14, s{S_T0}', 's_addc_u32 s15, s15, 0'] + srd(S_OUT, 14, 15, 245760)
    pro += [f's_mov_b32 s{S_OOFF}, 0', f's_mov_b32 s{S_WOOFF}, 0']
    def issue(ks):
        slot = ks % RING; ob = V_OF + (ks % NB)*8
        tag = (f'w{slot}', f'w{ks}', True)
        return [f's_add_u32 m0, s{S_LB}, {slot*2048}',
                f'buffer_load_dwordx4 {vr(ob, 4)}, v{V_OV}, {sr(S_OF, 4)}, s{S_OOFF} offen',
                dma(V_WV, S_WO, S_WOOFF, 0, False, tag),
                f'buffer_load_dwordx4 {vr(ob+4, 4)}, v{V_OV}, {sr(S_OF, 4)}, s{S_OOFF} offen offset:1024',
                dma(V_WV + 1, S_WO, S_WOOFF, 1024, False, tag),
                f's_add_u32 s{S_OOFF}, s{S_OOFF}, 2048', f's_add_u32 s{S_WOOFF}, s{S_WOOFF}, 16384']
    def wreads(ks):
        slot = ks % RING; f = A_WF + (ks % 2)*8
        return [Ins(f'ds_read_b64_tr_b16 {ar(f + N*4 + u*2, 2)}, v{V_WA2+N} offset:{slot*2048 + 1024*u}', (f'w{slot}', f'w{ks}', True)) for N in range(2) for u in range(2)]
    for ks in range(NB - 1): pro += issue(ks)
    for r in range(V_ACC, V_ACC + 64, 2): pro.append(f'v_mov_b64 {vr(r, 2)}, 0')
    pro += [f's_mov_b32 s{S_CNT}, 4', f's_waitcnt vmcnt({(NB-2)*4})'] + st() + wreads(0)
    P.seg(pro)
    def step(ks):
        f = A_WF + (ks % 2)*8; ob = V_OF + (ks % NB)*8
        mf = [f'{MF} {vr(acc(N, qt), 16)}, {ar(f + N*4, 4)}, {vr(ob + qt*4, 4)}, {vr(acc(N, qt), 16)}' for N in range(2) for qt in range(2)]
        iss = issue(ks + NB - 1)
        g = [iss[:3], iss[3:], [f's_waitcnt vmcnt({(NB-2)*4})'] + wreads(ks + 1), []]
        return ['s_waitcnt lgkmcnt(0)'] + weave(mf, g)
    bodies = []
    for it in range(4):
        b = ['.p2align 3', 'L_op:'] + st()
        for k in range(RING): b += step(it*RING + k)
        b += [f's_sub_u32 s{S_CNT}, s{S_CNT}, 1', f's_cmp_lg_u32 s{S_CNT}, 0', 's_cbranch_scc1 L_op']
        bodies.append(b)
    P.loop(bodies)
    seq = ['s_waitcnt vmcnt(0) lgkmcnt(0)'] + st() + ['s_barrier',
           f'v_and_b32 v{T+1}, 31, v0', f'v_lshrrev_b32 v{T+2}, 5, v0', f'v_mul_u32_u24 v{T+1}, 272, v{T+1}',
           f'v_lshl_add_u32 v{T+1}, v{T+2}, 4, v{T+1}', f's_mul_i32 s{S_T0}, s{S_W}, 17408', f'v_add_u32 v{T+1}, s{S_T0}, v{T+1}', 's_nop 4']
    for N in range(2):
        for qt in range(2):
            for g in range(4):
                seq.append(f'ds_write_b128 v{T+1}, {vr(acc(N, qt) + 4*g, 4)} offset:{qt*32*272 + N*128 + g*32}')
    seq += [f'v_lshrrev_b32 v{T+2}, 3, v0', f's_lshl_b32 s{S_T0}, s{S_W}, 4', f'v_add_u32 v{T+2}, s{S_T0}, v{T+2}',
            f'v_and_b32 v{T+3}, 7, v0', f'v_mul_u32_u24 v{T+4}, 272, v{T+2}', f'v_lshl_add_u32 v{T+4}, v{T+3}, 5, v{T+4}',
            f's_lshl_b32 s{S_T0}, s{S_RG}, 6', f'v_add_u32 v{T+2}, s{S_T0}, v{T+2}', f'v_lshlrev_b32 v{T+2}, 10, v{T+2}',
            f'v_lshl_add_u32 v{T+2}, v{T+3}, 4, v{T+2}', f's_lshl_b32 s{S_T1}, s{S_CG}, 7', f's_add_u32 s{S_T0}, s{S_T1}, 8192',
            's_waitcnt lgkmcnt(0)', 's_barrier']
    for i in range(2):
        for p in range(4):
            for hlf in range(2):
                seq.append(f'ds_read_b128 {vr(V_OF + (i*8 + p*2 + hlf)*4, 4)}, v{T+4} offset:{p*17408 + i*8*272 + hlf*16}')
    for i in range(2):
        b = V_OF + i*32
        seq.append(f's_waitcnt lgkmcnt({8 if i == 0 else 0})')
        for j in range(0, 8, 2):
            seq += [f'v_pk_add_f32 {vr(b+j, 2)}, {vr(b+j, 2)}, {vr(b+8+j, 2)}', f'v_pk_add_f32 {vr(b+16+j, 2)}, {vr(b+16+j, 2)}, {vr(b+24+j, 2)}']
        for j in range(0, 8, 2): seq.append(f'v_pk_add_f32 {vr(b+j, 2)}, {vr(b+j, 2)}, {vr(b+16+j, 2)}')
        for j in range(4): seq.append(f'v_cvt_pk_bf16_f32 v{b+j}, v{b+2*j}, v{b+2*j+1}')
        seq.append(f'buffer_store_dwordx4 {vr(b, 4)}, v{T+2}, {sr(S_OUT, 4)}, s{S_T0 if i else S_T1} offen')
    seq += st.dump(0x2100000, S_OF)
    seq += ['L_op_end:', 's_endpgm']
    P.seg(seq)

HEADER = open('standalone__gqa_block_cached__near_ridge.s.ref').read().split('; Override')[0]

def kd(name, nv, accum, ns=102):
    return f'''.amdhsa_kernel {name}
  .amdhsa_next_free_vgpr {nv}
  .amdhsa_next_free_sgpr {ns}
  .amdhsa_accum_offset {accum}
  .amdhsa_group_segment_fixed_size 0
  .amdhsa_kernarg_size 64
  .amdhsa_user_sgpr_count 2
  .amdhsa_user_sgpr_kernarg_segment_ptr 1
  .amdhsa_system_sgpr_workgroup_id_x 1
.end_amdhsa_kernel
'''

def build(stamps=False):
    P1 = Prog(); st = gen_attn(P1, stamps); gen_attn_tail(P1, st)
    e1 = check(P1.trace[:], 'attn-slots')
    e1 = [e for e in e1 if 'LDS read of' not in e or "'st" in e]
    retag(P1)
    e2 = [e for e in check(P1.trace, 'attn')]
    P2 = Prog(); gen_oproj(P2, stamps)
    e3 = check(P2.trace, 'oproj')
    errs = sorted(set(e1 + e2)) + e3
    for e in errs[:40]: print('CHECK:', e, file=sys.stderr)
    txt = HEADER
    txt += '; @launch kernel=attn_kernel grid=(256,1,1) block=(256,1,1) lds=163840\n'
    txt += '; @launch kernel=oproj_kernel grid=(256,1,1) block=(256,1,1) lds=131072\n'
    txt += '.amdgcn_target "amdgcn-amd-amdhsa--gfx950"\n.text\n'
    for name, P in (('attn_kernel', P1), ('oproj_kernel', P2)):
        txt += f'.globl {name}\n.p2align 8\n.type {name},@function\n' + P.text()
    txt += '.section .rodata,"a"\n.p2align 6\n' + kd('attn_kernel', 432, 256) + '.p2align 6\n' + kd('oproj_kernel', 176, 160)
    return txt, errs

if __name__ == '__main__':
    stamps = '--stamps' in sys.argv
    for a in sys.argv:
        if a.startswith('--dbg='): DBGWG, DBGOFF = map(int, a[6:].split(','))
    out = [a for a in sys.argv[1:] if not a.startswith('--')]
    txt, errs = build(stamps)
    open(out[0] if out else 'standalone__gqa_block_cached__near_ridge.s', 'w').write(txt)
    print('errors:', len(errs))
```

```python
import re

REG = re.compile(r'^(-?)([vas])(\d+)$')
RNG = re.compile(r'^(-?)([vas])\[(\d+):(\d+)\]$')

def regs_of(op):
    op = op.strip()
    if op.startswith('abs(') or op.startswith('|'):
        op = op.strip('|').replace('abs(', '').rstrip(')')
    m = REG.match(op)
    if m: return [(m.group(2), int(m.group(3)))]
    m = RNG.match(op)
    if m: return [(m.group(2), i) for i in range(int(m.group(3)), int(m.group(4)) + 1)]
    if op == 'vcc': return [('x', 'vcc')]
    if op == 'exec': return [('x', 'exec')]
    if op == 'm0': return [('x', 'm0')]
    return []

TRANS = ('v_exp_f32', 'v_log_f32', 'v_rcp_f32', 'v_rsq_f32', 'v_sqrt_f32')

class Ins:
    __slots__ = ('text', 'mn', 'rd', 'wr', 'kind', 'tag', 'ops', 'srcc')
    def __init__(self, text, tag=None):
        self.text = text
        self.tag = tag
        t = text.split(';')[0].strip()
        self.srcc = []
        if t.endswith(':') or t.startswith('.') or not t:
            self.mn = ''; self.rd = []; self.wr = []; self.kind = 'label'; self.ops = []
            return
        parts = t.split(None, 1)
        mn = parts[0]; self.mn = mn
        ops = []
        if len(parts) > 1:
            ops = [o.strip() for o in parts[1].split(',')]
            last = ops[-1].split()
            ops = ops[:-1] + [last[0]] + last[1:]
        self.ops = ops
        R = lambda l: [r for o in l for r in regs_of(o)]
        if mn.startswith('v_mfma'):
            self.kind = 'mfma'; self.wr = R(ops[:1]); self.rd = R(ops[1:4]); self.srcc = R(ops[3:4])
        elif mn.startswith('ds_read'):
            self.kind = 'dsr'; self.wr = R(ops[:1]); self.rd = R(ops[1:2])
        elif mn.startswith('ds_write'):
            self.kind = 'dsw'; self.wr = []; self.rd = R(ops[:2])
        elif mn.startswith('buffer_load') or mn.startswith('global_load'):
            if 'lds' in ops:
                self.kind = 'dma'; self.wr = []; self.rd = R(ops[:3]) + [('x', 'm0')]
            else:
                self.kind = 'vld'; self.wr = R(ops[:1]); self.rd = R(ops[1:4])
        elif mn.startswith('buffer_store') or mn.startswith('global_store'):
            self.kind = 'vst'; self.wr = []; self.rd = R(ops[:4])
        elif mn.startswith('buffer_atomic') or mn.startswith('global_atomic'):
            self.kind = 'vst'; self.wr = []; self.rd = R(ops[:4])
        elif mn.startswith('buffer_') :
            self.kind = 'vst'; self.wr = []; self.rd = []
        elif mn.startswith('v_permlane'):
            self.kind = 'valu'; self.wr = R(ops[:2]); self.rd = R(ops[:2])
        elif mn.startswith('v_'):
            self.kind = 'valu'; self.wr = R(ops[:1]); self.rd = R(ops[1:])
            if mn.startswith('v_fmac'): self.rd += self.wr
            if mn.startswith('v_cndmask') and len(ops) == 3: self.rd.append(('x', 'vcc'))
        elif mn.startswith('s_load') or mn.startswith('s_memtime') or mn.startswith('s_memrealtime'):
            self.kind = 'smem'; self.wr = R(ops[:1]); self.rd = R(ops[1:2])
        elif mn in ('s_waitcnt', 's_barrier', 's_nop', 's_endpgm', 's_branch', 's_sleep', 's_setprio') or mn.startswith('s_cbranch'):
            self.kind = mn; self.wr = []; self.rd = []
        elif mn.startswith('s_cmp'):
            self.kind = 'salu'; self.wr = []; self.rd = R(ops)
        elif mn.startswith('s_'):
            self.kind = 'salu'; self.wr = R(ops[:1]); self.rd = R(ops[1:])
            if 'saveexec' in mn: self.wr.append(('x', 'exec'))
        else:
            raise ValueError('unknown instruction ' + text)

def mfma_passes(mn):
    if '32x32x16' in mn: return 8
    if '16x16x32' in mn: return 4
    raise ValueError(mn)

def check(trace, name=''):
    errs = []
    pos = 0
    last_valu_w = {}
    last_trans_w = {}
    last_mfma_w = {}
    last_mfma_c = {}
    last_valu_sw = {}
    last_m0 = -100
    last_st = {}
    vm = []
    lg = []
    pend = {}
    smem_pend = set()
    dsw_src = {}
    landed = {}
    inflight_tags = {}
    region_reads = {}
    def err(i, msg):
        errs.append(f'[{name}] #{i} {trace[i].text.strip()} :: {msg}')
    for i, ins in enumerate(trace):
        k = ins.kind
        if k == 'label': continue
        for r in ins.rd + ins.wr:
            if r in pend: err(i, f'touches {r} still being loaded by "{pend[r].text.strip()}"')
            if r in smem_pend: err(i, f'touches {r} pending smem')
        if k == 'vld':
            for r in ins.wr:
                if r in dsw_src: err(i, f'load overwrites {r} still read by a pending ds_write')
        if k == 'mfma':
            for r in ins.rd:
                if r in last_valu_w and pos - last_valu_w[r] - 1 < 2: err(i, f'valu->mfma {r} dist {pos-last_valu_w[r]-1}')
            cset = tuple(ins.srcc)
            for r in ins.rd:
                if r in last_mfma_w:
                    p, ps, dst = last_mfma_w[r]
                    d = pos - p - 1
                    if r in ins.srcc and r not in regs_of(ins.ops[1]) + regs_of(ins.ops[2]):
                        if cset == dst and ps == mfma_passes(ins.mn): need = 0
                        else: need = {4: 6, 8: 10}[ps]
                    else:
                        need = {4: 8, 8: 12}[ps]
                    if d < need: err(i, f'mfma->mfma {r} dist {d} need {need}')
            for r in ins.wr:
                if r in last_mfma_w and r not in ins.srcc:
                    p, ps, dst = last_mfma_w[r]
                    d = pos - p - 1
                    need = {4: 6, 8: 10}[ps]
                    if d < need: err(i, f'mfma WAW {r} dist {d} need {need}')
        if k in ('valu', 'dsw', 'vst', 'dsr', 'vld', 'dma'):
            for r in ins.rd + ins.wr:
                if r in last_mfma_w:
                    p, ps, dst = last_mfma_w[r]
                    d = pos - p - 1
                    need = {4: 8, 8: 12}[ps]
                    if d < need: err(i, f'mfma->use {r} dist {d} need {need}')
        if k == 'valu':
            for r in ins.wr:
                if r in last_mfma_c:
                    p, ps = last_mfma_c[r]
                    d = pos - p - 1
                    need = {4: 3, 8: 7}[ps]
                    if d < need: err(i, f'mfma srcC WAR {r} dist {d} need {need}')
                if r in last_st and pos - last_st[r] - 1 < 2: err(i, f'store-data WAR {r}')
            if ins.mn.split('_e')[0] not in TRANS:
                for r in ins.rd:
                    if r in last_trans_w and pos - last_trans_w[r] - 1 < 1: err(i, f'trans->valu {r}')
            for r in ins.rd:
                if r in last_valu_sw and pos - last_valu_sw[r] - 1 < 2: err(i, f'valu sgpr->valu {r}')
            if ins.mn.startswith('v_permlane'):
                for r in ins.rd:
                    if r in last_valu_w and pos - last_valu_w[r] - 1 < 2: err(i, f'valu->permlane {r}')
            if ins.mn.startswith('v_readfirstlane') or ins.mn.startswith('v_readlane'):
                for r in ins.rd:
                    if r in last_valu_w and pos - last_valu_w[r] - 1 < 1: err(i, f'valu->readlane {r}')
        if k in ('vld', 'vst', 'dma'):
            for r in ins.rd:
                if r in last_valu_sw and pos - last_valu_sw[r] - 1 < 5: err(i, f'valu sgpr->vmem {r}')
        if k == 'dma' and pos - last_m0 - 1 < 1: err(i, 'm0->dma')
        if k == 'dsr' and ins.tag is not None:
            region, content, priv = ins.tag
            st = landed.get((region, content))
            need = 'own' if priv else 'all'
            if not (st == 'all' or (priv and st == 'own')) or inflight_tags.get((region, content), 0):
                err(i, f'LDS read of {ins.tag} not visible (state {st})')
            region_reads[region] = 'pending'
        if k in ('dma', 'dsw') and ins.tag is not None:
            region, content, priv = ins.tag
            st = region_reads.get(region, 'free')
            if not (st == 'free' or (priv and st == 'done')):
                err(i, f'DMA into {ins.tag} while region reads are {st}')
            for key in [key for key in landed if key[0] == region and key[1] != content]:
                del landed[key]
            inflight_tags[(region, content)] = inflight_tags.get((region, content), 0) + 1
            landed.pop((region, content), None)
        if k == 'valu':
            for r in ins.wr:
                if r[0] in 'va':
                    last_valu_w[r] = pos
                    last_trans_w.pop(r, None)
                    if ins.mn.split('_e')[0] in TRANS: last_trans_w[r] = pos
                    last_mfma_w.pop(r, None)
                else:
                    last_valu_sw[r] = pos
        if k == 'mfma':
            ps = mfma_passes(ins.mn)
            for r in ins.wr: last_mfma_w[r] = (pos, ps, tuple(ins.wr)); last_valu_w.pop(r, None)
            for r in ins.srcc: last_mfma_c[r] = (pos, ps)
        if k == 'salu':
            for r in ins.wr:
                if r == ('x', 'm0'): last_m0 = pos
                last_valu_sw.pop(r, None)
        if k in ('vld', 'vst', 'dma'):
            vm.append(ins)
            if len(vm) > 63: err(i, 'vmcnt overflow')
            for r in ins.wr: pend[r] = ins; last_mfma_w.pop(r, None)
            if k == 'vst' and ('x4' in ins.mn or 'x3' in ins.mn):
                for r in regs_of(ins.ops[0]): last_st[r] = pos
        if k in ('dsr', 'dsw'):
            lg.append(ins)
            if k == 'dsw':
                for r in ins.rd: dsw_src[r] = ins
            for r in ins.wr: pend[r] = ins; last_mfma_w.pop(r, None)
        if k == 'smem':
            for r in ins.wr: smem_pend.add(r)
        if k == 's_waitcnt':
            m = re.search(r'vmcnt\((\d+)\)', ins.text)
            if m:
                n = int(m.group(1))
                while len(vm) > n:
                    o = vm.pop(0)
                    for r in o.wr:
                        if pend.get(r) is o: del pend[r]
                    if o.kind == 'dma' and o.tag is not None:
                        key = (o.tag[0], o.tag[1])
                        inflight_tags[key] -= 1
                        if inflight_tags[key] == 0: landed[key] = 'own'
            m = re.search(r'lgkmcnt\((\d+)\)', ins.text)
            if m:
                n = int(m.group(1))
                if smem_pend and n == 0: smem_pend.clear()
                while len(lg) > n:
                    o = lg.pop(0)
                    for r in o.wr:
                        if pend.get(r) is o: del pend[r]
                    if o.kind == 'dsw':
                        for r in o.rd: dsw_src.pop(r, None)
                    if o.kind == 'dsw' and o.tag is not None:
                        key = (o.tag[0], o.tag[1])
                        inflight_tags[key] -= 1
                        if inflight_tags[key] == 0: landed[key] = 'own'
                for region in list(region_reads):
                    if region_reads[region] == 'pending' and not any(o.kind == 'dsr' and o.tag is not None and o.tag[0] == region for o in lg):
                        region_reads[region] = 'done'
        if k == 's_barrier':
            for key in landed: landed[key] = 'all'
            for region in region_reads:
                if region_reads[region] == 'done': region_reads[region] = 'free'
        if k == 's_nop':
            pos += int(ins.ops[0]) + 1
        else:
            pos += 1
    return errs

class Prog:
    def __init__(self):
        self.code = []
        self.trace = []
    def seg(self, lines, code=True):
        out = [l if isinstance(l, Ins) else Ins(l) for l in lines]
        if code: self.code += out
        self.trace += out
    def loop(self, bodies):
        b0 = [l if isinstance(l, Ins) else Ins(l) for l in bodies[0]]
        self.code += b0
        for b in bodies:
            bb = [l if isinstance(l, Ins) else Ins(l) for l in b]
            assert [x.text for x in bb] == [x.text for x in b0], 'loop bodies differ'
            self.trace += bb
    def text(self):
        out = []
        for i in self.code:
            out.append(i.text if i.kind == 'label' else '    ' + i.text)
        return '\n'.join(out) + '\n'

def weave(mfmas, gaps):
    out = []
    for m, g in zip(mfmas, gaps):
        out.append(m); out += g
    return out
```

```python
import struct, math, sys
from asmlib import *

def f2u(x): return struct.unpack('<I', struct.pack('<f', x))[0]
CSCALE = f2u(math.log2(math.e) / math.sqrt(128.0))
MF = 'v_mfma_f32_32x32x16_bf16'
NAME = 'standalone__gqa_block_cached__near_ridge_kernel'
OPT = dict(stamps=False, dbg=None, force_slow=False)

def vr(b, n=1): return f'v{b}' if n == 1 else f'v[{b}:{b+n-1}]'
def ar(b, n=1): return f'a{b}' if n == 1 else f'a[{b}:{b+n-1}]'
def sr(b, n=1): return f's{b}' if n == 1 else f's[{b}:{b+n-1}]'
flat = lambda items: [i for it in items for i in it]

S_X, S_WQ, S_K, S_V, S_O, S_WO, S_OF, S_OUT, S_FL = 20, 24, 28, 32, 36, 68, 72, 76, 80
S_B, S_H, S_W, S_XCD = 40, 41, 42, 43
S_XOFF, S_WOFF, S_W8K, S_DELTA, S_CNT, S_T0, S_T1 = 44, 45, 46, 47, 48, 49, 50
S_KOFF, S_VOFF, S_M0K, S_POS, S_C = 51, 52, 53, 54, 55
S_W4K, S_W2K, S_KB, S_WC = 56, 57, 58, 59
S_ST = 60
S_STAMP = 84
S_RG, S_CG, S_T2 = 64, 65, 66
V_T = 1
V_KA, V_VA, V_VK, V_VV, V_STAMP, V_L, V_WV = 8, 16, 20, 24, 25, 26, 28
V_SB = [32, 64]
V_NEGM = 96
V_VX, V_VW, V_XA, V_WA, V_LW = 96, 104, 108, 112, 116
V_Q, V_O0 = 128, 192
A_O1, A_KF, A_VF, A_F = 0, 64, 96, [128, 152]
R = 5
SLOT = [16384, 65536, 114688]

def O_(qt, T): return vr(V_O0 + T*16, 16) if qt == 0 else ar(A_O1 + T*16, 16)
def ACC(qt, T): return [V_SB[0], V_SB[1], V_O0, V_O0 + 32][T] + 16*qt
def Q_(qt, t): return V_Q + (qt*8 + t)*4

class Stamps:
    def __init__(self, on): self.on = on
    def __call__(self, first=False):
        if not self.on: return []
        pre = [f's_mov_b32 s{S_STAMP+2}, 0'] if first else []
        return pre + [f's_memtime {sr(S_STAMP, 2)}', f's_mov_b32 m0, s{S_STAMP+2}', 's_waitcnt lgkmcnt(0)', f'v_writelane_b32 v{V_STAMP}, s{S_STAMP}, m0',
                      f's_add_u32 s{S_STAMP+2}, s{S_STAMP+2}, 1']
    def start(self):
        if not self.on: return []
        return [f's_memrealtime {sr(S_STAMP+4, 2)}'] + self(True)
    def dump(self, base, srdreg):
        if not self.on: return []
        return ['s_waitcnt vmcnt(0)'] + self() + [f's_memrealtime {sr(S_STAMP, 2)}', 's_waitcnt lgkmcnt(0)', f'v_writelane_b32 v{V_STAMP}, s{S_STAMP}, 63',
                f'v_writelane_b32 v{V_STAMP}, s{S_STAMP+4}, 62', f'v_writelane_b32 v{V_STAMP}, s{S_STAMP+2}, 61',
                f's_lshl_b32 s{S_T0}, s2, 2', f's_add_u32 s{S_T0}, s{S_T0}, s{S_W}', f's_lshl_b32 s{S_T0}, s{S_T0}, 8',
                f's_add_u32 s{S_T0}, s{S_T0}, {base:#x}', f's_add_u32 s12, s18, s{S_T0}', 's_addc_u32 s13, s19, 0'] + srd(srdreg, 12, 13, 256) + [
                'v_lshlrev_b32 v4, 2, v0', f'buffer_store_dword v{V_STAMP}, v4, {sr(srdreg, 4)}, 0 offen']

def srd(d, lo, hi, size):
    return [f's_mov_b32 s{d}, s{lo}', f's_mov_b32 s{d+1}, s{hi}', f's_mov_b32 s{d+2}, {size}', f's_mov_b32 s{d+3}, 0x00020000']

def dma(voff, srdreg, soff, imm, nt, tag):
    return Ins(f'buffer_load_dwordx4 v{voff}, {sr(srdreg, 4)}, s{soff} offen offset:{imm}{" nt" if nt else ""} lds', tag)

def spread(n, items, start=0, end=None):
    end = n if end is None else end
    g = [[] for _ in range(n)]
    for i, it in enumerate(items):
        g[start + i*(end - start)//len(items)] += it
    return g
def merge(*gs): return [sum((g[i] for g in gs), []) for i in range(len(gs[0]))]
def one(l): return [[x] for x in l]
def cost(ins):
    t = ins.text if isinstance(ins, Ins) else ins
    mn = t.split()[0]
    if mn == 'v_exp_f32': return 8
    if mn.startswith('buffer_'): return 24
    if mn.startswith('ds_write'): return 12
    return 4
def fill(gaps, seq, start, end):
    base = [sum(cost(x) for x in g) for g in gaps]
    tot = sum(base[start:end]) + sum(cost(x) for x in seq)
    n = end - start; k = 0; acc = 0
    for gi in range(start, end):
        acc += base[gi]
        target = tot*(gi - start + 1)/n
        while k < len(seq) and (acc + cost(seq[k])/2 <= target or gi == end - 1):
            gaps[gi].append(seq[k]); acc += cost(seq[k]); k += 1
    return gaps

def unit_of(kind, u): return (u % R)*2 + (1 if kind == 'V' else 0)
def uaddr(kind, u): return unit_of(kind, u)*16384
def slot_units(slot): return [1 + 3*slot + i for i in range(3)]

def q_tag(s, part): return (f'u{slot_units((s + 1) % 3)[part]}', f'st{s}', False)
def wq_read(s, k, T, dst):
    return [Ins(f'ds_read_b64_tr_b16 {ar(dst + u*2, 2)}, v{V_WA+T} offset:{4096*k + 1024*u}', q_tag(s, 2)) for u in range(2)]
def x_read(s, k, qt, dst):
    return [Ins(f'ds_read_b128 {ar(dst, 4)}, v{V_XA+k} offset:{4096*qt}', q_tag(s, qt))]
def q_reads(s, k, F):
    return flat([wq_read(s, k, T, F + T*4) for T in range(4)]) + flat([x_read(s, k, qt, F + 16 + qt*4) for qt in range(2)])
def q_mfmas(F, zero=False):
    return [f'{MF} {vr(ACC(qt, T), 16)}, {ar(F + T*4, 4)}, {ar(F + 16 + qt*4, 4)}, {"0" if zero else vr(ACC(qt, T), 16)}' for T in range(4) for qt in range(2)]
def q_dma_groups(s):
    base = SLOT[(s + 1) % 3]
    pre = [f's_add_u32 s{S_T0}, s{S_XCD}, {s}', f's_and_b32 s{S_T0}, s{S_T0}, 7', f's_lshl_b32 s{S_XOFF}, s{S_T0}, 7', f's_lshl_b32 s{S_WOFF}, s{S_T0}, 19']
    ga = [pre + [f's_add_u32 m0, s{S_W8K}, {base}', 's_nop 0', dma(V_VX, S_X, S_XOFF, 0, False, q_tag(s, 0))]] + [[dma(V_VX + i, S_X, S_XOFF, 1024*i, False, q_tag(s, 0))] for i in range(1, 4)]
    gb = [[f's_add_u32 m0, s{S_W8K}, {base + 4096}', 's_nop 0', dma(V_VX + 4, S_X, S_XOFF, 0, False, q_tag(s, 1))]] + [[dma(V_VX + 4 + i, S_X, S_XOFF, 1024*i, False, q_tag(s, 1))] for i in range(1, 4)]
    gc = [[f's_add_u32 m0, s{S_W4K}, {base + 32768}', 's_nop 0', dma(V_VW, S_WQ, S_WOFF, 0, False, q_tag(s, 2))]] + [[dma(V_VW + i, S_WQ, S_WOFF, 1024*i, False, q_tag(s, 2))] for i in range(1, 4)]
    return ga, gb, gc
def q_addr_advance(s):
    d = SLOT[(s + 2) % 3] - SLOT[(s + 1) % 3]
    return [f'v_add_u32 v{V_XA+i}, {d}, v{V_XA+i}' for i in range(4)] + [f'v_add_u32 v{V_WA+i}, {d}, v{V_WA+i}' for i in range(4)]

def kv_soff(kind, u, dst):
    off = u*16384 - (8192 if kind == 'V' else 0)
    return [f's_add_u32 s{dst}, s{S_KB}, {off}', f's_and_b32 s{dst}, s{dst}, 0x1ffff']
def kv_half_soff(u, dst):
    off = 0 if u == 0 else 8*16384 - 8192
    return [f's_sub_u32 s{dst}, s{S_KB}, s{S_W4K}', f's_add_u32 s{dst}, s{dst}, {off}', f's_and_b32 s{dst}, s{dst}, 0x1ffff', f's_add_u32 s{dst}, s{dst}, s{S_W2K}']
def kv_dma_fixed(kind, u):
    tag = (f'u{unit_of(kind, u)}', f'{kind}{u}', False)
    pre = kv_soff(kind, u, S_T1) + [f's_add_u32 m0, s{S_W4K}, {uaddr(kind, u)}', 's_nop 0']
    vo = (lambda i: V_VK + i) if kind == 'K' else (lambda i: V_VV)
    sd = S_K if kind == 'K' else S_V
    return [pre + [dma(vo(0), sd, S_T1, 0, True, tag)]] + [[dma(vo(i), sd, S_T1, 1024*i, True, tag)] for i in range(1, 4)]
LAND = [('V', 0, i, 176 + 4*i) for i in range(2)] + [('K', 1, i, 184 + 4*i) for i in range(4)] + [('V', 1, i, 200 + 4*i) for i in range(4)] \
     + [('K', 2, i, 64 + 4*i) for i in range(4)] + [('V', 2, i, 80 + 4*i) for i in range(4)] + [('K', 3, i, 96 + 4*i) for i in range(4)]
def land_load(n):
    kind, u, i, reg = LAND[n]
    pre = kv_half_soff(0, S_T2) if u == 0 else kv_soff(kind, u, S_T2)
    vo = V_VK + i if kind == 'K' else V_VV
    return pre + [f'buffer_load_dwordx4 {ar(reg, 4)}, v{vo}, {sr(S_K if kind == "K" else S_V, 4)}, s{S_T2} offen offset:{1024*i} nt']
def land_write(n):
    kind, u, i, reg = LAND[n]
    a = uaddr(kind, u) + 1024*i
    if u == 0: base, a = V_LW + 2, a + 8192
    elif a >= 65536: base, a = V_LW + 1, a - 65536
    else: base = V_LW
    return Ins(f'ds_write_b128 v{base}, {ar(reg, 4)} offset:{a}', (f'u{unit_of(kind, u)}', f'{kind}{u}', False))

def k_reads(u, half, dst=A_KF):
    return [Ins(f'ds_read_b128 {ar(dst + 4*t, 4)}, v{V_KA+t} offset:{8192*half}', (f'u{unit_of("K", u)}', f'K{u}', False)) for t in range(8)]
def v_reads(u, half, dst=A_VF):
    return [Ins(f'ds_read_b64_tr_b16 {ar(dst + (tp*4+T)*4 + uu*2, 2)}, v{V_VA+T} offset:{8192*half + 4096*tp + 2048*uu}', (f'u{unit_of("V", u)}', f'V{u}', False))
            for tp in range(2) for T in range(4) for uu in range(2)]
def qk_mfmas(sb, first_c):
    out = []
    for t in range(8):
        for qt in range(2):
            d = vr(sb + 16*qt, 16)
            out.append(f'{MF} {d}, {ar(A_KF + 4*t, 4)}, {vr(Q_(qt, t), 4)}, {d if t else first_c(qt)}')
    return out
def pv_mfmas(sb, vf=lambda i: ar(A_VF + 4*i, 4), qorder=None):
    order = [(tp, T, qt) for tp in range(2) for T in range(4) for qt in range(2)]
    if qorder: order = [(tp, T, qt) for qt in qorder for tp in range(2) for T in range(4)]
    return [f'{MF} {O_(qt, T)}, {vf(tp*4 + T)}, {vr(sb + 16*qt + 8*tp, 4)}, {O_(qt, T)}' for tp, T, qt in order]
def sm_seq(sb):
    regs = [(qt, sb + 16*qt + 8*tp + i, sb + 16*qt + 8*tp) for tp in range(2) for qt in range(2) for i in range(8)]
    out = []
    def post(k):
        qt, r, base = regs[k]
        o = [f'v_add_f32 v{V_L+qt}, v{V_L+qt}, v{r}']
        if (r - base) & 1: o.append(f'v_cvt_pk_bf16_f32 v{base + (r - base)//2}, v{r-1}, v{r}')
        return o
    for k in range(32):
        out.append(f'v_exp_f32 v{regs[k][1]}, v{regs[k][1]}')
        if k: out += post(k - 1)
    return out + ['s_nop 0'] + post(31)
def kv_addr_advance():
    out = [f's_add_u32 s{S_POS}, s{S_POS}, 32768', f's_cmp_ge_u32 s{S_POS}, {R*32768}',
           f's_cselect_b32 s{S_T0}, {R*32768}, 0', f's_sub_u32 s{S_DELTA}, 32768, s{S_T0}', f's_sub_u32 s{S_POS}, s{S_POS}, s{S_T0}']
    return out + [f'v_add_u32 v{V_KA+i}, s{S_DELTA}, v{V_KA+i}' for i in range(8)] + [f'v_add_u32 v{V_VA+i}, s{S_DELTA}, v{V_VA+i}' for i in range(4)]
def negm_c(qt): return vr(V_NEGM + 16*qt, 16)

PIECE = [6, 8, 9, 0, 1, 2, 3, 4, 5, 7]
def wo_tag(c): return (f'u{PIECE[c % 10]}', f'W{c}', True)
def wo_dma(c, m0calc, first_use):
    tag = wo_tag(c)
    if first_use: tag = (tag[0], tag[1], False)
    pre = [f's_lshl_b32 s{S_T1}, s{S_WC}, 15', m0calc, f's_add_u32 s{S_WC}, s{S_WC}, 1']
    g = [pre + [dma(V_WV, S_WO, S_T1, 0, False, tag)]] + [[dma(V_WV + i, S_WO, S_T1, 1024*i, False, tag)] for i in range(1, 4)]
    g[1] = [f's_and_b32 s{S_WC}, s{S_WC}, 31'] + g[1]
    return g

def attn_iter(it, label):
    u = it + 1
    if it < 3:
        ktag = (f'u{unit_of("K", it)}', f'K{it+R}', False); vtag = (f'u{unit_of("V", it)}', f'V{it+R}', False)
        d1 = [[f's_mov_b32 m0, s{S_M0K}', 's_nop 0', dma(V_VK, S_K, S_KOFF, 0, True, ktag)]] + [[dma(V_VK + i, S_K, S_KOFF, 1024*i, True, ktag)] for i in range(1, 4)]
        d2 = [[f's_add_u32 m0, s{S_M0K}, 16384', 's_nop 0', dma(V_VV, S_V, S_VOFF, 0, True, vtag)]] + [[dma(V_VV, S_V, S_VOFF, 1024*i, True, vtag)] for i in range(1, 4)]
        adv = [f's_add_u32 s{S_KOFF}, s{S_KOFF}, 16384', f's_and_b32 s{S_KOFF}, s{S_KOFF}, 0x1ffff',
               f's_add_u32 s{S_VOFF}, s{S_VOFF}, 16384', f's_and_b32 s{S_VOFF}, s{S_VOFF}, 0x1ffff']
        vm = 24
    elif it == 3:
        vtag = (f'u{unit_of("V", 3)}', 'V8', False)
        d1 = [kv_half_soff(8, S_T2) + [f's_add_u32 m0, s{S_W2K}, {uaddr("V", 3)}', 's_nop 0', dma(V_VV, S_V, S_T2, 0, True, vtag)], [dma(V_VV, S_V, S_T2, 1024, True, vtag)]]
        d2 = wo_dma(0, f's_mov_b32 m0, s{S_M0K}', True)
        adv = []; vm = 22
    else:
        c = 2*(it - 4) + 1
        d1 = wo_dma(c, f's_mov_b32 m0, s{S_M0K}', True)
        d2 = wo_dma(c + 1, f's_add_u32 m0, s{S_M0K}, 16384', True)
        adv = []; vm = 22
    adv += [f's_add_u32 s{S_M0K}, s{S_M0K}, 32768', f's_cmp_ge_u32 s{S_M0K}, {R*32768}',
            f's_cselect_b32 s{S_T0}, {R*32768}, 0', f's_sub_u32 s{S_M0K}, s{S_M0K}, s{S_T0}']
    out = []
    for half in range(2):
        psb = V_SB[half]; csb = V_SB[1 - half]
        mf = pv_mfmas(psb) + qk_mfmas(psb, negm_c)
        g = spread(32, one(k_reads(u, half)), 0, 3)
        g = merge(g, spread(32, one(v_reads(u, half)), 16, 28))
        g[15].append('s_waitcnt lgkmcnt(0)')
        g = merge(g, spread(32, d1 if half == 0 else d2, 3, 15))
        if half == 1:
            g[28] += [adv]
            g[28] = [x for y in g[28] for x in (y if isinstance(y, list) else [y])]
            g[31] += kv_addr_advance()
        fill(g, sm_seq(csb), 3, 31)
        if half == 0: g[31].append('s_waitcnt lgkmcnt(0)')
        out += weave(mf, g)
    if label: out += [f's_sub_u32 s{S_CNT}, s{S_CNT}, 1', f's_cmp_lg_u32 s{S_CNT}, 0']
    out += [f's_waitcnt vmcnt({vm}) lgkmcnt(0)', 's_barrier']
    if label: out += [f's_cbranch_scc1 {label}']
    return out

def max_to_negm(T):
    seq = [f'v_mov_b32 v{T+1}, v{T}', f'v_mov_b32 v{T+3}, v{T+2}',
           f'v_and_b32 v{T+4}, 31, v0', f's_lshl_b32 s{S_T0}, s{S_W}, 6', f'v_add_u32 v{T+4}, s{S_T0}, v{T+4}',
           f'v_permlane32_swap_b32 v{T}, v{T+1}', f'v_permlane32_swap_b32 v{T+2}, v{T+3}',
           f'v_cmp_lt_u32 vcc, 207, v{T+4}', f'v_mov_b32 v{T+5}, 0xff800000',
           f'v_max_f32 v{T}, v{T}, v{T+1}', f'v_max_f32 v{T+2}, v{T+2}, v{T+3}',
           f'v_sub_f32 v{V_NEGM}, 0, v{T}', f'v_sub_f32 v{T+2}, 0, v{T+2}',
           f'v_cndmask_b32 v{V_NEGM+16}, v{T+2}, v{T+5}, vcc',
           f'v_mov_b32 v{V_NEGM+1}, v{V_NEGM}', f'v_mov_b32 v{V_NEGM+17}, v{V_NEGM+16}']
    for qt in range(2):
        for i in range(2, 16, 2): seq.append(f'v_mov_b64 {vr(V_NEGM+16*qt+i, 2)}, {vr(V_NEGM+16*qt, 2)}')
    return seq

def row_sums(T):
    red = [f'v_mov_b32 v{T+qt}, v{V_L+qt}' for qt in range(2)] + [f's_mov_b32 s{S_T0}, 0x4e800000', 's_nop 0']
    red += [f'v_permlane32_swap_b32 v{V_L+qt}, v{T+qt}' for qt in range(2)]
    red += [f'v_add_f32 v{V_L+qt}, v{V_L+qt}, v{T+qt}' for qt in range(2)]
    red += [f'v_add_f32 v{T}, v{V_L}, v{V_L+1}', f'v_max_f32 v{T+1}, 0x0da24260, v{V_L}', f'v_max_f32 v{T+2}, 0x0da24260, v{V_L+1}',
            f'v_cmp_nge_f32 vcc, s{S_T0}, v{T}', f'v_rcp_f32 v{T+1}, v{T+1}', f'v_rcp_f32 v{T+2}, v{T+2}']
    return red

def gen(P, slow):
    st = Stamps(OPT['stamps'])
    T = V_T
    pro = [f'{NAME}:', 's_cmp_ge_u32 s2, 256', 's_cbranch_scc1 L_end'] + st.start() + [
           's_load_dwordx8 s[4:11], s[0:1], 0', 's_load_dwordx8 s[12:19], s[0:1], 32',
           f'v_lshrrev_b32 v{T}, 6, v0', 'v_and_b32 v0, 63, v0', f'v_readfirstlane_b32 s{S_W}, v{T}',
           f's_and_b32 s{S_XCD}, s2, 7', f's_lshr_b32 s{S_T1}, s2, 3',
           f's_and_b32 s{S_B}, s2, 1', f's_lshl_b32 s{S_B}, s{S_B}, 2', f's_and_b32 s{S_T0}, s{S_T1}, 3', f's_add_u32 s{S_B}, s{S_B}, s{S_T0}',
           f's_lshr_b32 s{S_H}, s{S_XCD}, 1', f's_lshl_b32 s{S_H}, s{S_H}, 3', f's_lshr_b32 s{S_T0}, s{S_T1}, 2', f's_add_u32 s{S_H}, s{S_H}, s{S_T0}',
           f's_lshr_b32 s{S_RG}, s{S_T1}, 3', f's_and_b32 s{S_CG}, s{S_T1}, 7',
           f's_lshl_b32 s{S_W4K}, s{S_W}, 12', f's_lshl_b32 s{S_W8K}, s{S_W}, 13', f's_lshl_b32 s{S_W2K}, s{S_W}, 11',
           f's_lshl_b32 s{S_KB}, s{S_CG}, 14', f's_add_u32 s{S_KB}, s{S_KB}, s{S_W4K}',
           f'v_lshrrev_b32 v{T+1}, 3, v0', f'v_and_b32 v{T+2}, 7, v0', f'v_lshrrev_b32 v{T+3}, 4, v0',
           f'v_xor_b32 v{T+2}, v{T+2}, v{T+3}', f'v_lshlrev_b32 v{T+2}, 4, v{T+2}',
           f'v_lshl_add_u32 v{T+2}, v{T+1}, 10, v{T+2}', f'v_lshl_add_u32 v{V_VX}, v{T}, 16, v{T+2}',
           f'v_xor_b32 v{T+2}, 64, v{V_VX}']
    for i in range(1, 8):
        pro.append(f'v_add_u32 v{V_VX+i}, {(8*i - i % 4)*1024}, v{T + 2 if i & 1 else V_VX}')
    pro += [f'v_and_b32 v{T+4}, 15, v0', f'v_lshlrev_b32 v{T+5}, 2, v{T+3}', f'v_xor_b32 v{T+5}, v{T+4}, v{T+5}',
            f'v_lshlrev_b32 v{T+5}, 4, v{T+5}',
            f'v_lshl_add_u32 v{V_VV}, v{T+3}, 8, v{T+5}',
            f'v_lshl_add_u32 v{T+6}, v{T}, 4, v{T+3}',
            f'v_lshl_add_u32 v{V_VW}, v{T+6}, 13, v{T+5}']
    for i in range(1, 4): pro.append(f'v_add_u32 v{V_VW+i}, {i*(32768-1024)}, v{V_VW}')
    pro += [f'v_xor_b32 v{T+4}, v{T+4}, v{T+3}', f'v_lshlrev_b32 v{T+4}, 4, v{T+4}', f'v_lshl_add_u32 v{V_VK}, v{T+3}, 8, v{T+4}']
    for i in range(1, 4): pro.append(f'v_xor_b32 v{V_VK+i}, {i << 6}, v{V_VK}')
    pro += [f's_mul_i32 s{S_T0}, s{S_B}, 245760', f's_lshl_b32 s{S_T1}, s{S_H}, 8', 's_waitcnt lgkmcnt(0)',
            f's_add_u32 s4, s4, s{S_T0}', 's_addc_u32 s5, s5, 0'] + srd(S_X, 4, 5, 245760)
    pro += [f's_add_u32 s10, s10, s{S_T1}', 's_addc_u32 s11, s11, 0'] + srd(S_WQ, 10, 11, 0) + [f's_sub_u32 s{S_WQ+2}, 4194304, s{S_T1}']
    pro += st() + flat(flat(q_dma_groups(0))) + st()
    pro += [f's_lshl_b32 s{S_T0}, s{S_B}, 5', f's_add_u32 s{S_T2}, s{S_T0}, s{S_H}', f's_lshl_b32 s{S_T0}, s{S_T2}, 17',
            f's_add_u32 s6, s6, s{S_T0}', 's_addc_u32 s7, s7, 0', f's_add_u32 s8, s8, s{S_T0}', 's_addc_u32 s9, s9, 0']
    pro += srd(S_K, 6, 7, 131072) + srd(S_V, 8, 9, 131072)
    pro += [f's_lshl_b32 s{S_T0}, s{S_B}, 2', f's_add_u32 s{S_T0}, s{S_T0}, s{S_W}', f's_lshl_b32 s{S_T0}, s{S_T0}, 5',
            f's_add_u32 s{S_T0}, s{S_T0}, s{S_H}', f's_lshl_b32 s{S_T0}, s{S_T0}, 14',
            f's_add_u32 s4, s18, s{S_T0}', 's_addc_u32 s5, s19, 0'] + srd(S_O, 4, 5, 16384)
    pro += [f's_lshl_b32 s{S_T0}, s{S_XCD}, 2', f's_add_u32 s{S_T0}, s{S_T0}, s{S_RG}', f's_lshl_b32 s{S_T0}, s{S_T0}, 2',
            f's_add_u32 s{S_T0}, s{S_T0}, s{S_W}', f's_lshl_b32 s{S_T0}, s{S_T0}, 17',
            f's_add_u32 s4, s18, s{S_T0}', 's_addc_u32 s5, s19, 0'] + srd(S_OF, 4, 5, 131072)
    pro += [f's_lshl_b32 s{S_T0}, s{S_W}, 20', f's_lshl_b32 s{S_T1}, s{S_CG}, 7', f's_add_u32 s{S_T0}, s{S_T0}, s{S_T1}',
            f's_add_u32 s12, s12, s{S_T0}', 's_addc_u32 s13, s13, 0'] + srd(S_WO, 12, 13, 0) + [f's_sub_u32 s{S_WO+2}, 4194304, s{S_T0}']
    pro += [f's_mul_i32 s{S_T0}, s{S_XCD}, 245760', f's_add_u32 s14, s14, s{S_T0}', 's_addc_u32 s15, s15, 0'] + srd(S_OUT, 14, 15, 245760)
    pro += srd(S_FL, 16, 17, 256) + [f's_lshl_b32 s{S_WC}, s{S_XCD}, 2', f's_mov_b32 s{S_C}, {CSCALE:#x}']
    pro += [f'v_and_b32 v{T+1}, 31, v0', f'v_lshrrev_b32 v{T+2}, 5, v0',
            f'v_bfe_u32 v{T+3}, v0, 1, 3', f'v_xor_b32 v{T+3}, v{T+3}, v{T+2}', f'v_lshlrev_b32 v{T+3}, 4, v{T+3}',
            f'v_lshl_add_u32 v{T+3}, v{T+1}, 7, v{T+3}', f'v_lshl_add_u32 v{T+3}, v{T}, 13, v{T+3}']
    for s in range(4): pro += [f'v_xor_b32 v{V_XA+s}, {s << 5}, v{T+3}', f'v_add_u32 v{V_XA+s}, {SLOT[1]}, v{V_XA+s}']
    pro += [f'v_and_b32 v{T+3}, 15, v0', f'v_xor_b32 v{T+3}, v{T+3}, v{T+2}', f'v_lshlrev_b32 v{T+3}, 4, v{T+3}',
            f'v_lshl_add_u32 v{V_KA}, v{T+1}, 8, v{T+3}']
    for t in range(1, 8): pro.append(f'v_xor_b32 v{V_KA+t}, {t << 5}, v{V_KA}')
    pro += [f'v_bfe_u32 v{T+3}, v0, 2, 2', f'v_mul_u32_u24 v{T+4}, 320, v{T+3}',
            f'v_and_b32 v{T+5}, 16, v0', f'v_lshl_add_u32 v{T+4}, v{T+5}, 1, v{T+4}',
            f'v_and_b32 v{T+5}, 3, v0', f'v_lshl_add_u32 v{T+6}, v{T+5}, 3, v{T+4}',
            f'v_lshl_add_u32 v{T+6}, v{T+2}, 10, v{T+6}']
    for i in range(4): pro += [f'v_xor_b32 v{V_VA+i}, {i << 6}, v{T+6}', f'v_add_u32 v{V_VA+i}, 16384, v{V_VA+i}']
    pro += [f'v_and_b32 v{T+5}, 1, v0', f'v_lshl_add_u32 v{T+4}, v{T+5}, 4, v{T+4}',
            f'v_and_b32 v{T+5}, 2, v0', f'v_lshl_add_u32 v{T+4}, v{T+5}, 2, v{T+4}',
            f'v_lshl_add_u32 v{T+4}, v{T+2}, 11, v{T+4}']
    for i in range(4): pro += [f'v_xor_b32 v{V_WA+i}, {i << 6}, v{T+4}', f'v_add_u32 v{V_WA+i}, {SLOT[1] + 32768}, v{V_WA+i}']
    pro += [f'v_lshlrev_b32 v{T+3}, 4, v0', f'v_add_u32 v{V_LW}, s{S_W4K}, v{T+3}', f'v_add_u32 v{V_LW+1}, 65536, v{V_LW}', f'v_add_u32 v{V_LW+2}, s{S_W2K}, v{T+3}']
    pro += [f'v_lshrrev_b32 v{T+1}, 3, v0', f'v_and_b32 v{T+2}, 7, v0', f'v_and_b32 v{T+3}, 16, v0', f'v_lshrrev_b32 v{T+3}, 2, v{T+3}',
            f'v_xor_b32 v{T+2}, v{T+2}, v{T+3}', f'v_lshlrev_b32 v{T+2}, 4, v{T+2}', f'v_lshl_add_u32 v{V_WV}, v{T+1}, 10, v{T+2}']
    for i in range(1, 4): pro.append(f'v_add_u32 v{V_WV+i}, {i*(8192-1024)}, v{V_WV}')
    pro += st() + flat(flat(q_dma_groups(1))) + st() + ['s_waitcnt vmcnt(12)', 's_barrier'] + st() + q_reads(0, 0, A_F[0])
    P.seg(pro)

    def qgroup(F, reads, extra, zero=False, valu=()):
        g = spread(8, one(reads), 0, 5)
        if extra: g = merge(g, spread(8, extra, 2, 8))
        if valu: fill(g, list(valu), 0, 8)
        return ['s_waitcnt lgkmcnt(0)'] + weave(q_mfmas(F, zero), g)
    kvplan = {0: kv_dma_fixed('K', 0), 1: [land_load(n) for n in range(0, 4)], 2: [land_load(n) for n in range(4, 8)],
              3: [land_load(n) for n in range(8, 12)], 4: [land_load(n) for n in range(12, 16)], 5: [land_load(n) for n in range(16, 19)]}
    zo = [f'v_accvgpr_write_b32 a{A_O1+i}, 0' for i in range(64)]
    prev_kv = 0
    for s in range(6):
        ga, gb, gc = q_dma_groups(s + 2)
        seq = []
        if s: seq += qgroup(A_F[1], q_reads(s, 0, A_F[0]), None, valu=zo[16*(s-1):16*s])
        seq += qgroup(A_F[0], q_reads(s, 1, A_F[1]), ga + gb[:1], zero=(s == 0))
        seq += qgroup(A_F[1], q_reads(s, 2, A_F[0]), gb[1:] + gc[:2])
        seq += qgroup(A_F[0], q_reads(s, 3, A_F[1]), gc[2:] + kvplan[s])
        nkv = len(kvplan[s])
        seq += q_addr_advance(s) + [f's_waitcnt vmcnt({prev_kv + 12 + nkv}) lgkmcnt(0)', 's_barrier'] + st()
        prev_kv = nkv
        P.seg(seq)
    w1 = [land_write(n) for n in range(10)]
    seq = qgroup(A_F[1], q_reads(6, 0, A_F[0]), [land_load(n) for n in range(19, 22)])
    seq += qgroup(A_F[0], q_reads(6, 1, A_F[1]), one(w1[:4]))
    seq += qgroup(A_F[1], q_reads(6, 2, A_F[0]), one(w1[4:7]))
    seq += qgroup(A_F[0], q_reads(6, 3, A_F[1]), one(w1[7:]))
    seq += q_addr_advance(6) + ['s_waitcnt vmcnt(6) lgkmcnt(0)', 's_barrier'] + st()
    P.seg(seq)
    Bf = [128 + 4*i for i in range(6)] + [176, 180]
    Af = [184, 200, 224, 240]
    def a_reads(T_): return flat([wq_read(7, k, T_, Af[T_] + 4*k) for k in range(4)])
    def t_mfmas(T_): return [f'{MF} {vr(ACC(qt, T_), 16)}, {ar(Af[T_] + 4*k, 4)}, {ar(Bf[k*2+qt], 4)}, {vr(ACC(qt, T_), 16)}' for k in range(4) for qt in range(2)]
    def conv(T_):
        o = []
        for qt in range(2):
            b = ACC(qt, T_)
            for i in range(8):
                o += [f'v_mul_f32 v{b+2*i}, s{S_C}, v{b+2*i}', f'v_mul_f32 v{b+2*i+1}, s{S_C}, v{b+2*i+1}']
                if i: o.append(f'v_cvt_pk_bf16_f32 v{Q_(qt, 2*T_) + i - 1}, v{b+2*i-2}, v{b+2*i-1}')
            o.append(f'v_cvt_pk_bf16_f32 v{Q_(qt, 2*T_) + 7}, v{b+14}, v{b+15}')
        return o
    b_reads = flat([x_read(7, k, qt, Bf[k*2+qt]) for k in range(4) for qt in range(2)])
    w2 = [land_write(n) for n in range(10, 22)]
    seq = weave(q_mfmas(A_F[1]), spread(8, one(b_reads + a_reads(0)), 0, 6))
    seq += ['s_waitcnt lgkmcnt(0)'] + weave(t_mfmas(0), merge(spread(8, one(a_reads(1) + a_reads(2) + a_reads(3)), 0, 8)))
    g = spread(8, one(w2), 0, 6); fill(g, conv(0)[:24], 3, 8)
    seq += ['s_waitcnt vmcnt(0) lgkmcnt(8)'] + weave(t_mfmas(1), g)
    seq += ['s_waitcnt lgkmcnt(0)', 's_barrier'] + st()
    dm = kv_dma_fixed('V', 3) + kv_dma_fixed('K', 4) + kv_dma_fixed('V', 4)
    g = spread(8, dm[:2], 0, 8); fill(g, conv(0)[24:] + conv(1)[:24], 0, 8)
    seq += weave(t_mfmas(2), g)
    g = merge(spread(8, one(k_reads(0, 0)), 0, 4), spread(8, dm[2:4], 4, 8)); fill(g, conv(1)[24:] + conv(2)[:12], 0, 8)
    seq += weave(t_mfmas(3), g)
    qk0 = qk_mfmas(V_SB[0], lambda qt: '0')
    g = [[] for _ in range(8)]; fill(g, conv(2)[12:] + conv(3)[:12], 0, 8)
    seq += ['s_waitcnt lgkmcnt(0)'] + weave(qk0[:8], g)
    g = [[] for _ in range(4)]; fill(g, conv(3)[12:], 0, 4)
    seq += weave(qk0[8:12], g)
    zq = [f'v_mov_b64 {vr(V_O0 + i, 2)}, 0' for i in range(0, 64, 2)]
    g = [zq[0:5], zq[5:10], zq[10:15], zq[15:20]]
    seq += ['s_nop 1'] + weave(qk0[12:], g) + k_reads(0, 1) + flat(dm[4:6])
    sb = V_SB[0]
    for qt in range(2):
        b = sb + 16*qt; m = T + 2*qt
        seq.append(f'v_max3_f32 v{m}, v{b}, v{b+1}, v{b+2}')
        for i in range(3, 15, 2): seq.append(f'v_max3_f32 v{m}, v{m}, v{b+i}, v{b+i+1}')
        seq.append(f'v_max_f32 v{m}, v{m}, v{b+15}')
    seq += max_to_negm(T) + [f'v_mov_b64 {vr(V_L, 2)}, 0', f's_mov_b32 s{S_POS}, 0', 's_waitcnt lgkmcnt(0)']
    sub = [f'v_add_f32 v{sb+16*qt+8*tp+i}, v{sb+16*qt+8*tp+i}, v{V_NEGM+16*qt}' for tp in range(2) for qt in range(2) for i in range(8)]
    sm = sm_seq(sb); mix = sub[:4]; k = 4
    for x in sm:
        mix.append(x)
        if x.startswith('v_exp') and k < 32: mix.append(sub[k]); k += 1
    g = merge(spread(16, one(v_reads(0, 1)), 0, 12), spread(16, dm[6:], 1, 16))
    fill(g, mix + zq[20:], 0, 16)
    seq += weave(qk_mfmas(V_SB[1], negm_c), g) + kv_addr_advance()
    seq += kv_soff('K', R, S_KOFF) + kv_soff('V', R, S_VOFF) + [f's_mov_b32 s{S_CNT}, 3', f's_mov_b32 s{S_M0K}, s{S_W4K}', 's_waitcnt lgkmcnt(0)', 's_barrier']
    P.seg(seq)
    P.loop([['.p2align 3', 'L_attA:'] + st() + attn_iter(it, 'L_attA') for it in range(3)])
    P.seg(st() + attn_iter(3, None) + [f's_mov_b32 s{S_CNT}, 3'])
    P.loop([['.p2align 3', 'L_attB:'] + st() + attn_iter(it, 'L_attB') for it in range(4, 7)])
    wd = wo_dma(7, f's_add_u32 m0, s{S_W4K}, {PIECE[7]*16384}', True) + wo_dma(8, f's_add_u32 m0, s{S_W4K}, {PIECE[8]*16384}', True)
    g = spread(16, one(v_reads(8, 0, dst=A_KF)), 0, 8)
    fill(g, sm_seq(V_SB[1]), 1, 16)
    seq = st() + weave(pv_mfmas(V_SB[0]), g)
    pv = pv_mfmas(V_SB[1], vf=lambda i: ar(A_KF + 4*i, 4), qorder=(1, 0))
    V_SA = 7
    red = row_sums(T) + [f'v_lshlrev_b32 v{V_SA}, 4, v0'] + [f's_mov_b32 s{S_ST+i}, {4096*i}' for i in range(4)]
    g = spread(8, wd, 0, 8); fill(g, red, 0, 8)
    seq += ['s_waitcnt lgkmcnt(0)', 's_nop 0'] + weave(pv[:8], g)
    if OPT['force_slow']: seq += ['s_branch L_slow']
    seq += ['s_cbranch_vccnz L_slow', 'L_back:']
    P.seg(seq)
    if slow: P.trace += slow_path(T)
    def norm(qt):
        o = []
        for T_ in range(4):
            b = V_O0 + 16*T_ if qt == 0 else V_Q + 16*T_
            if qt == 1: o += [f'v_accvgpr_read_b32 v{b+i}, a{A_O1 + 16*T_ + i}' for i in range(16)]
            o += [f'v_mul_f32 v{b+i}, v{b+i}, v{T+1+qt}' for i in range(16)]
            o += [f'v_cvt_pk_bf16_f32 v{b+i}, v{b+2*i}, v{b+2*i+1}' for i in range(8)]
            o += [f'buffer_store_dwordx4 {vr(b + 4*tp, 4)}, v{V_SA}, {sr(S_O, 4)}, s{S_ST+T_} offen offset:{(tp*2+qt)*1024} sc1' for tp in range(2)]
        return o
    n1 = norm(1)
    g = [[] for _ in range(8)]; fill(g, n1[:42], 2, 8)
    seq = weave(pv[8:], g) + n1[42:] + norm(0) + st()

    V_WA2 = 8
    V_ACC = 32; V_OFR = 96; NB = 8; V_WF = 160
    def acc(N, qt): return V_ACC + (N*2 + qt)*16
    def wreads(c, kk, dst):
        a = PIECE[c % 10]*16384 + kk*2048
        reg = a >> 16; a &= 0xffff
        return [Ins(f'ds_read_b64_tr_b16 {dst(N*4 + u*2)}, v{V_WA2 + reg*2 + N} offset:{a + 1024*u}', wo_tag(c)) for N in range(2) for u in range(2)]
    seq += [f'v_bfe_u32 v{T+1}, v0, 2, 2', f'v_lshrrev_b32 v{T+2}, 5, v0', f'v_lshl_add_u32 v{T+2}, v{T+2}, 2, v{T+1}',
            f'v_lshlrev_b32 v{T+2}, 7, v{T+2}', f'v_and_b32 v{T+3}, 8, v0', f'v_lshl_add_u32 v{T+2}, v{T+3}, 3, v{T+2}',
            f'v_and_b32 v{T+3}, 16, v0', f'v_lshl_add_u32 v{T+2}, v{T+3}, 1, v{T+2}',
            f'v_and_b32 v{T+3}, 3, v0', f'v_lshl_add_u32 v{T+2}, v{T+3}, 3, v{T+2}',
            f'v_add_u32 v{V_WA2}, s{S_W4K}, v{T+2}', f'v_xor_b32 v{V_WA2+1}, 64, v{V_WA2}']
    for r_ in (1, 2):
        for N in range(2): seq.append(f'v_add_u32 v{V_WA2 + 2*r_ + N}, {65536*r_}, v{V_WA2 + N}')
    seq += [f's_mov_b32 s{S_T2}, s{S_WC}', f's_add_u32 s{S_WC}, s{S_WC}, 1', f's_and_b32 s{S_WC}, s{S_WC}, 31']
    order = [f'W{c}' for c in range(1, 9) for _ in range(4)] + ['st']*16
    def wait_for(name):
        idx = max(i for i, n in enumerate(order) if n == name) if name in order else -1
        return len(order) - 1 - idx
    def pull(c):
        o = []
        if f'W{c}' in order: o.append(f's_waitcnt vmcnt({wait_for(f"W{c}")})')
        for kk in range(2): o += wreads(c, kk, lambda i: ar(16*c + 8*kk + i, 2))
        o.append('s_waitcnt lgkmcnt(0)')
        o += flat(wo_dma(c + 10, f's_add_u32 m0, s{S_W4K}, {PIECE[c % 10]*16384}', False))
        order.extend([f'W{c+10}']*4)
        return o
    for c in range(3): seq += pull(c)
    seq += [f's_lshl_b32 s{S_T0}, s{S_B}, 5', f's_add_u32 s{S_T0}, s{S_T0}, s{S_H}', f'v_mov_b32 v{T+1}, s{S_T0}', f'v_mov_b32 v{T+2}, 1',
            f's_cmp_eq_u32 s{S_W}, 0', f's_cselect_b32 s{S_FL+2}, 256, 0',
            f's_waitcnt vmcnt({wait_for("st")})', 's_barrier',
            'v_cmp_eq_u32 vcc, 0, v0', f's_and_saveexec_b64 {sr(S_ST, 2)}, vcc',
            f'buffer_store_byte v{T+2}, v{T+1}, {sr(S_FL, 4)}, 0 offen sc1', f's_mov_b64 exec, {sr(S_ST, 2)}'] + st()
    order.append('fl')
    t9 = (wo_tag(9)[0], 'W9', False)
    seq += [f's_lshl_b32 s{S_T1}, s{S_T2}, 15', f's_add_u32 m0, s{S_W4K}, {PIECE[9]*16384}', 's_nop 0'] + [dma(V_WV + i, S_WO, S_T1, 1024*i, False, t9) for i in range(4)]
    order.extend(['W9']*4)
    for c in range(3, 16): seq += pull(c)
    seq += st()
    seq += [f's_mov_b32 s{S_FL+2}, 256', f's_lshl_b32 s{S_T0}, s{S_XCD}, 5', f's_lshl_b32 s{S_T1}, s{S_W}, 3', f's_add_u32 s{S_T0}, s{S_T0}, s{S_T1}',
            f'v_mov_b32 v{T+1}, s{S_T0}', f's_mov_b32 s{S_CNT}, 0x40000', f's_mov_b32 s{S_T2}, 0x01010101',
            'L_poll:', f'buffer_load_dwordx2 {vr(T+3, 2)}, v{T+1}, {sr(S_FL, 4)}, 0 offen sc1', 's_waitcnt vmcnt(0)',
            f'v_and_b32 v{T+3}, v{T+3}, v{T+4}', 's_nop 0', f'v_readfirstlane_b32 s{S_T0}, v{T+3}', 's_nop 3',
            f's_cmp_eq_u32 s{S_T0}, s{S_T2}', 's_cbranch_scc1 L_go',
            's_sleep 4', f's_sub_u32 s{S_CNT}, s{S_CNT}, 1', f's_cmp_lg_u32 s{S_CNT}, 0', 's_cbranch_scc1 L_poll', 'L_go:'] + st()
    del order[:]
    corder = list(range(16, 22)) + list(range(0, 16)) + list(range(22, 32))
    steps = [(c, kk) for c in corder for kk in range(2)]
    def oload(n):
        c, kk = steps[n]; ob = V_OFR + (n % NB)*8
        o = []
        if kk == 0: o += [f's_lshl_b32 s{S_T0}, s{S_XCD}, 2', f's_add_u32 s{S_T0}, s{S_T0}, {c}', f's_and_b32 s{S_T0}, s{S_T0}, 31', f's_lshl_b32 s{S_T2}, s{S_T0}, 12']
        l = [f'buffer_load_dwordx4 {vr(ob + 4*qt, 4)}, v{V_SA}, {sr(S_OF, 4)}, s{S_T2} offen offset:{kk*2048 + qt*1024} sc1' for qt in range(2)]
        order.extend([f'O{n}']*2)
        return [o + l[:1], l[1:]]
    def wfrag(n):
        c, kk = steps[n]
        if c < 16: return lambda N: ar(16*c + 8*kk + 4*N, 4)
        return lambda N: vr(V_WF + (n % 2)*8 + 4*N, 4)
    def wread_step(n):
        c, kk = steps[n]
        if c < 16: return []
        o = []
        if f'W{c}' in order: o.append(f's_waitcnt vmcnt({wait_for(f"W{c}")})');
        return o + wreads(c, kk, lambda i: vr(V_WF + (n % 2)*8 + i, 2))
    DEPTH = 5
    for n in range(DEPTH): seq += flat(oload(n))
    seq += wread_step(0)
    for n in range(64):
        c, kk = steps[n]; ob = V_OFR + (n % NB)*8; wf = wfrag(n)
        mf = [f'{MF} {vr(acc(N, qt), 16)}, {wf(N)}, {vr(ob + 4*qt, 4)}, {vr(acc(N, qt), 16) if n else "0"}' for N in range(2) for qt in range(2)]
        pre = [f's_waitcnt vmcnt({wait_for(f"O{n}")}) lgkmcnt(0)']
        while order and order[0] != f'O{n}': order.pop(0)
        while order and order[0] == f'O{n}': order.pop(0)
        g = [[], [], [], []]
        if n + 1 < 64: g[0] += wread_step(n + 1)
        if n + DEPTH < 64:
            a, b = oload(n + DEPTH); g[1] += a; g[2] += b
        if kk == 1 and 16 <= c < 22:
            g[3] += flat(wo_dma(c + 10, f's_add_u32 m0, s{S_W4K}, {PIECE[c % 10]*16384}', False)); order.extend([f'W{c+10}']*4)
        seq += pre + weave(mf, g)
    seq += st() + ['s_barrier',
           f'v_and_b32 v{T+1}, 31, v0', f'v_lshrrev_b32 v{T+2}, 5, v0', f'v_mul_u32_u24 v{T+1}, 272, v{T+1}',
           f'v_lshl_add_u32 v{T+1}, v{T+2}, 4, v{T+1}', f's_mul_i32 s{S_T0}, s{S_W}, 17408', f'v_add_u32 v{T+1}, s{S_T0}, v{T+1}', 's_nop 4']
    for N in range(2):
        for qt in range(2):
            for g_ in range(4):
                seq.append(f'ds_write_b128 v{T+1}, {vr(acc(N, qt) + 4*g_, 4)} offset:{qt*32*272 + N*128 + g_*32}')
    seq += [f'v_lshrrev_b32 v{T+2}, 3, v0', f's_lshl_b32 s{S_T0}, s{S_W}, 4', f'v_add_u32 v{T+2}, s{S_T0}, v{T+2}',
            f'v_and_b32 v{T+3}, 7, v0', f'v_mul_u32_u24 v{T+4}, 272, v{T+2}', f'v_lshl_add_u32 v{T+4}, v{T+3}, 5, v{T+4}',
            f's_lshl_b32 s{S_T0}, s{S_RG}, 6', f'v_add_u32 v{T+2}, s{S_T0}, v{T+2}', f'v_lshlrev_b32 v{T+2}, 10, v{T+2}',
            f'v_lshl_add_u32 v{T+2}, v{T+3}, 4, v{T+2}', f's_lshl_b32 s{S_T1}, s{S_CG}, 7', f's_add_u32 s{S_T0}, s{S_T1}, 8192',
            's_waitcnt lgkmcnt(0)', 's_barrier']
    for i in range(2):
        for p in range(4):
            for hlf in range(2):
                seq.append(f'ds_read_b128 {vr(V_OFR + (i*8 + p*2 + hlf)*4, 4)}, v{T+4} offset:{p*17408 + i*8*272 + hlf*16}')
    for i in range(2):
        b = V_OFR + i*32
        seq.append(f's_waitcnt lgkmcnt({8 if i == 0 else 0})')
        for j in range(0, 8, 2):
            seq += [f'v_pk_add_f32 {vr(b+j, 2)}, {vr(b+j, 2)}, {vr(b+8+j, 2)}', f'v_pk_add_f32 {vr(b+16+j, 2)}, {vr(b+16+j, 2)}, {vr(b+24+j, 2)}']
        for j in range(0, 8, 2): seq.append(f'v_pk_add_f32 {vr(b+j, 2)}, {vr(b+j, 2)}, {vr(b+16+j, 2)}')
        for j in range(4): seq.append(f'v_cvt_pk_bf16_f32 v{b+j}, v{b+2*j}, v{b+2*j+1}')
        seq.append(f'buffer_store_dwordx4 {vr(b, 4)}, v{T+2}, {sr(S_OUT, 4)}, s{S_T0 if i else S_T1} offen')
    seq += st.dump(0x2000000, S_O) + ['L_end:', 's_endpgm']
    P.seg(seq)
    P.code += slow_path(T)

def slow_path(T):
    KV_, VV_ = V_KA, V_KA + 1
    sb, tb = V_SB[0], V_SB[1]
    kload = [f'buffer_load_dwordx4 {ar(A_KF + 4*t, 4)}, v{KV_}, {sr(S_K, 4)}, s{S_T1} offen offset:{32*t}' for t in range(8)]
    s = ['L_slow:', 's_nop 15', f'v_and_b32 v{T+4}, 31, v0', f'v_lshrrev_b32 v{T+5}, 5, v0',
         f'v_lshlrev_b32 v{KV_}, 8, v{T+4}', f'v_lshl_add_u32 v{KV_}, v{T+5}, 4, v{KV_}',
         f'v_lshlrev_b32 v{VV_}, 1, v{T+4}', f'v_lshl_add_u32 v{VV_}, v{T+5}, 10, v{VV_}', f'v_add_u32 v{VV_+1}, 4096, v{VV_}',
         f'v_mov_b32 v{T}, 0xff800000', f'v_mov_b32 v{T+2}, 0xff800000', f's_mov_b32 s{S_T1}, 0', 'L_slow_max:']
    s += kload + ['s_waitcnt vmcnt(0)'] + qk_mfmas(sb, lambda qt: '0') + ['s_nop 15']
    for qt in range(2):
        for i in range(0, 16, 2): s.append(f'v_max3_f32 v{T+2*qt}, v{T+2*qt}, v{sb+16*qt+i}, v{sb+16*qt+i+1}')
    s += [f's_add_u32 s{S_T1}, s{S_T1}, 8192', f's_cmp_lt_u32 s{S_T1}, 131072', 's_cbranch_scc1 L_slow_max']
    s += max_to_negm(T) + [f'v_mov_b64 {vr(V_L, 2)}, 0', f's_mov_b32 s{S_T1}, 0']
    s += [f'v_mov_b64 {vr(V_O0 + i, 2)}, 0' for i in range(0, 64, 2)] + [f'v_accvgpr_write_b32 a{A_O1+i}, 0' for i in range(64)]
    s += ['L_slow_pv:'] + kload + ['s_waitcnt vmcnt(0)'] + qk_mfmas(sb, negm_c) + ['s_nop 15'] + sm_seq(sb)
    for tp in range(2):
        for T_ in range(4):
            for j in range(8):
                s.append(f'buffer_load_ushort v{tb+8+j}, v{VV_+tp}, {sr(S_V, 4)}, s{S_T1} offen offset:{(8*(j >> 2) + (j & 3))*256 + 64*T_}')
            s.append('s_waitcnt vmcnt(0)')
            s += [f'v_lshl_or_b32 v{tb+i}, v{tb+8+2*i+1}, 16, v{tb+8+2*i}' for i in range(4)] + ['s_nop 1']
            s += [f'{MF} {O_(qt, T_)}, {vr(tb, 4)}, {vr(sb + 16*qt + 8*tp, 4)}, {O_(qt, T_)}' for qt in range(2)]
    s += [f's_add_u32 s{S_T1}, s{S_T1}, 8192', f's_cmp_lt_u32 s{S_T1}, 131072', 's_cbranch_scc1 L_slow_pv']
    s += row_sums(T) + [f'v_mov_b64 {vr(tb + i, 2)}, 0' for i in range(0, 16, 2)] + [f'v_accvgpr_write_b32 a{A_KF+i}, 0' for i in range(32)]
    s += ['s_nop 15', 's_branch L_back']
    return [Ins(x) for x in s]

HEADER = open('standalone__gqa_block_cached__near_ridge.s.ref').read().split('; Override')[0]

def build():
    errs = []
    for slow in (False, True):
        P = Prog(); gen(P, slow)
        errs += check(P.trace, 'slow' if slow else 'fast')
    for e in errs[:40]: print('CHECK:', e, file=sys.stderr)
    txt = HEADER + '; @launch grid=(256,1,1) block=(256,1,1) lds=163840\n'
    txt += f'.amdgcn_target "amdgcn-amd-amdhsa--gfx950"\n.text\n.globl {NAME}\n.p2align 8\n.type {NAME},@function\n' + P.text()
    txt += f'''.section .rodata,"a"
.p2align 6
.amdhsa_kernel {NAME}
  .amdhsa_next_free_vgpr 512
  .amdhsa_next_free_sgpr 96
  .amdhsa_accum_offset 256
  .amdhsa_group_segment_fixed_size 0
  .amdhsa_kernarg_size 64
  .amdhsa_user_sgpr_count 2
  .amdhsa_user_sgpr_kernarg_segment_ptr 1
  .amdhsa_system_sgpr_workgroup_id_x 1
.end_amdhsa_kernel
'''
    return txt, errs

if __name__ == '__main__':
    OPT['stamps'] = '--stamps' in sys.argv
    OPT['force_slow'] = '--slow' in sys.argv
    out = [a for a in sys.argv[1:] if not a.startswith('--')]
    txt, errs = build()
    open(out[0] if out else 'standalone__gqa_block_cached__near_ridge.s', 'w').write(txt)
    print('errors:', len(errs))
```
